```python
import torch

def _softmax(x, axis=-1):
    return torch.softmax(x, dim=axis)
def _gelu(x):
    return torch.nn.functional.gelu(x, approximate="tanh")
def _silu(x):
    return torch.nn.functional.silu(x)
def _sigmoid(x):
    return torch.sigmoid(x)
def _layernorm(x, axis=-1, eps=1e-5):
    m = x.mean(dim=axis, keepdim=True)
    v = x.var(dim=axis, keepdim=True, unbiased=False)
    return (x - m) / torch.sqrt(v + eps)
def _scatter_add(tgt, idx, src, axis=0):
    return tgt.clone().index_add_(axis, idx, src)
def _segment_sum(src, seg, n):
    out = torch.zeros((n,) + src.shape[1:], dtype=src.dtype)
    return out.index_add_(0, seg, src)
def _pad(x, pw):
    flat = tuple(v for pair in reversed(pw) for v in pair)
    return torch.nn.functional.pad(x, flat)

kernel_name = 'standalone__glu_gated_bilinear__decode'

def setup_inputs():

    _w = (lambda a: (lambda t: t.to(torch.bfloat16) if t.is_floating_point() else t)(torch.as_tensor(a)))
    B, S, D, F = 1, 1, 1024, 3584
    return {
        "x": _w((lambda *s: torch.randn(*s, dtype=torch.bfloat16) * 0.05)(B, S, D)),
        "w_gate": _w((lambda *s: torch.randn(*s, dtype=torch.bfloat16) * 0.05)(D, F) * (D ** -0.5)),
        "w_up": _w((lambda *s: torch.randn(*s, dtype=torch.bfloat16) * 0.05)(D, F) * (D ** -0.5)),
        "w_down": _w((lambda *s: torch.randn(*s, dtype=torch.bfloat16) * 0.05)(F, D) * (F ** -0.5)),
    }

def reference(x, w_gate, w_up, w_down):
    g = torch.einsum("bsd,df->bsf", x, w_gate)
    u = torch.einsum("bsd,df->bsf", x, w_up)
    h = g * u
    return torch.einsum("bsf,fd->bsd", h, w_down)
```

```python
import sys
NAME = "standalone__glu_gated_bilinear__decode"
HDR = open('cdna_kernels/%s.s.ref' % NAME).read().split('; Override launch')[0]

def gen(nt_gu=False, nt_wd=True):
    o = []
    A = o.append
    A(HDR.rstrip('\n'))
    A("; @launch grid=(256,1,1) block=(256,1,1) lds=1024")
    A('.amdgcn_target "amdgcn-amd-amdhsa--gfx950"')
    A(".text")
    A(".globl %s_kernel" % NAME)
    A(".p2align 8")
    A(".type %s_kernel,@function" % NAME)
    A("%s_kernel:" % NAME)
    A("  s_load_dwordx2 s[4:5], s[0:1], 0")
    A("  s_load_dwordx2 s[8:9], s[0:1], 8")
    A("  s_load_dwordx2 s[12:13], s[0:1], 16")
    A("  s_load_dwordx2 s[16:17], s[0:1], 24")
    A("  s_load_dwordx2 s[20:21], s[0:1], 32")
    A("  s_load_dwordx2 s[24:25], s[0:1], 40")
    A("  s_load_dwordx2 s[28:29], s[0:1], 48")
    A("  s_movk_i32 s6, 2048")
    A("  s_mov_b32 s7, 0x20000")
    A("  s_mov_b32 s10, 7340032")
    A("  s_mov_b32 s11, 0x20000")
    A("  s_mov_b32 s14, 7340032")
    A("  s_mov_b32 s15, 0x20000")
    A("  s_mov_b32 s18, 7340032")
    A("  s_mov_b32 s19, 0x20000")
    A("  s_movk_i32 s22, 2048")
    A("  s_mov_b32 s23, 0x20000")
    A("  s_movk_i32 s26, 256")
    A("  s_mov_b32 s27, 0x20000")
    A("  s_mov_b32 s30, 917504")
    A("  s_mov_b32 s31, 0x20000")
    A("  s_cmp_ge_u32 s2, 224")
    A("  s_cbranch_scc1 L_reducer")
    A("  s_and_b32 s32, s2, 7")
    A("  s_lshr_b32 s33, s2, 5")
    A("  s_lshl_b32 s33, s33, 3")
    A("  s_add_u32 s33, s33, s32")
    A("  s_lshr_b32 s34, s2, 3")
    A("  s_and_b32 s34, s34, 3")
    A("  s_lshl_b32 s33, s33, 7")
    A("  s_lshl_b32 s34, s34, 5")
    A("  s_add_u32 s33, s33, s34")
    A("  v_lshrrev_b32 v2, 1, v0")
    A("  s_mov_b32 s35, 57344")
    A("  v_mul_lo_u32 v1, v2, s35")
    A("  v_and_b32 v3, 1, v0")
    A("  v_lshlrev_b32 v3, 4, v3")
    A("  v_add3_u32 v1, v1, v3, s33")
    A("  v_lshlrev_b32 v2, 4, v2")
    A("  s_lshl_b32 s36, s33, 10")
    A("  v_lshlrev_b32 v3, 3, v0")
    A("  v_add_u32 v3, s36, v3")
    A("  v_lshrrev_b32 v4, 3, v0")
    A("  s_movk_i32 s35, 28672")
    A("  v_mul_lo_u32 v4, v4, s35")
    A("  v_and_b32 v5, 7, v0")
    A("  v_lshlrev_b32 v5, 4, v5")
    A("  s_lshl_b32 s37, s2, 7")
    A("  v_add3_u32 v4, v4, v5, s37")
    for i in range(1, 8):
        A("  s_movk_i32 s%d, %d" % (40 + i, i * 7168) if i * 7168 < 32768 else "  s_mov_b32 s%d, %d" % (40 + i, i * 7168))
    for j in range(1, 8):
        A("  s_movk_i32 s%d, %d" % (48 + j, j * 4096))
    A("  s_mov_b32 s38, 0x05040100")
    A("  s_mov_b32 s39, 0x07060302")
    A("  v_mov_b32 v8, -1")
    A("  v_mov_b32 v9, -1")
    A("  v_mov_b32 v10, -1")
    A("  v_mov_b32 v11, -1")
    for k in range(16):
        A("  v_mov_b32 v%d, 0" % (16 + k))
    for k in range(4):
        A("  v_mov_b32 v%d, 0" % (12 + k))
    A("  s_waitcnt lgkmcnt(0)")
    A("  buffer_store_dwordx4 v[8:11], v4, s[28:31], 0 offen sc1")
    A("  buffer_load_dwordx4 v[32:35], v2, s[4:7], 0 offen")
    gu = " nt" if nt_gu else ""
    wdm = " nt" if nt_wd else ""
    def so(i): return "0" if i == 0 else "s%d" % (40 + i)
    base = 36
    for k in range(4):
        for m, srd in ((0, "s[8:11]"), (1, "s[12:15]")):
            for rr in range(2):
                r = 2 * k + rr
                reg = base + (k * 4 + m * 2 + rr) * 4
                A("  buffer_load_dwordx4 v[%d:%d], v1, %s, %s offen%s" % (reg, reg + 3, srd, so(r), gu))
    wbase = 100
    for j in range(16):
        reg = wbase + j * 2
        sof = "0" if j // 2 == 0 else "s%d" % (48 + j // 2)
        A("  buffer_load_dwordx2 v[%d:%d], v3, s[16:19], %s offen offset:%d%s" % (reg, reg + 1, sof, (j % 2) * 2048, wdm))
    A("  s_waitcnt vmcnt(33)")
    A("  s_barrier")
    A("  v_cmp_eq_u32 vcc, 0, v0")
    A("  s_and_saveexec_b64 s[56:57], vcc")
    A("  s_cbranch_execz L_noflag")
    A("  v_mov_b32 v5, s2")
    A("  v_mov_b32 v6, 1")
    A("  buffer_store_byte v6, v5, s[24:27], 0 offen sc1")
    A("L_noflag:")
    A("  s_mov_b64 exec, -1")
    for k in range(4):
        A("  s_waitcnt vmcnt(%d)" % (28 - 4 * k))
        for m in range(2):
            r0 = base + (k * 4 + m * 2) * 4
            r1 = r0 + 4
            acc = 16 + m * 8
            for c in range(4):
                A("  v_perm_b32 v6, v%d, v%d, s38" % (r1 + c, r0 + c))
                A("  v_perm_b32 v7, v%d, v%d, s39" % (r1 + c, r0 + c))
                A("  v_dot2c_f32_bf16 v%d, v%d, v6" % (acc + 2 * c, 32 + k))
                A("  v_dot2c_f32_bf16 v%d, v%d, v7" % (acc + 2 * c + 1, 32 + k))
    A("  s_nop 3")
    for k in range(8):
        A("  v_permlane32_swap_b32 v%d, v%d" % (16 + k, 24 + k))
    A("  s_nop 1")
    for k in range(8):
        A("  v_add_f32 v%d, v%d, v%d" % (16 + k, 16 + k, 24 + k))
    A("  s_nop 1")
    for k in range(4):
        A("  v_permlane16_swap_b32 v%d, v%d" % (16 + k, 20 + k))
    A("  s_nop 1")
    for k in range(4):
        A("  v_add_f32 v%d, v%d, v%d" % (16 + k, 16 + k, 20 + k))
    A("  s_nop 1")
    for ror in (2, 4, 8):
        for k in range(4):
            A("  v_add_f32_dpp v%d, v%d, v%d row_ror:%d row_mask:0xf bank_mask:0xf" % (16 + k, 16 + k, 16 + k, ror))
    A("  v_lshrrev_b32 v5, 6, v0")
    A("  v_lshlrev_b32 v5, 7, v5")
    A("  v_bfe_u32 v6, v0, 5, 1")
    A("  v_lshl_add_u32 v5, v6, 6, v5")
    A("  v_and_b32 v6, 1, v0")
    A("  v_lshl_add_u32 v5, v6, 5, v5")
    A("  v_bfe_u32 v6, v0, 4, 1")
    A("  v_lshl_add_u32 v5, v6, 4, v5")
    A("  s_mov_b32 exec_lo, 0x00030003")
    A("  s_mov_b32 exec_hi, 0x00030003")
    A("  ds_write_b128 v5, v[16:19]")
    A("  s_mov_b64 exec, -1")
    A("  v_and_b32 v6, 15, v0")
    A("  v_lshlrev_b32 v6, 2, v6")
    A("  s_waitcnt lgkmcnt(0)")
    A("  s_barrier")
    for w in range(4):
        A("  ds_read2_b32 v[%d:%d], v6 offset0:%d offset1:%d" % (16 + 2 * w, 17 + 2 * w, w * 32, w * 32 + 16))
    A("  s_waitcnt lgkmcnt(0)")
    A("  v_add_f32 v16, v16, v18")
    A("  v_add_f32 v17, v17, v19")
    A("  v_add_f32 v20, v20, v22")
    A("  v_add_f32 v21, v21, v23")
    A("  v_add_f32 v16, v16, v20")
    A("  v_add_f32 v17, v17, v21")
    A("  v_cvt_pk_bf16_f32 v18, v16, v17")
    A("  v_lshlrev_b32 v16, 16, v18")
    A("  v_and_b32 v17, 0xffff0000, v18")
    A("  v_mul_f32 v16, v16, v17")
    A("  s_nop 1")
    A("  v_mov_b32_dpp v17, v16 quad_perm:[1,0,3,2] row_mask:0xf bank_mask:0xf")
    A("  v_cvt_pk_bf16_f32 v18, v16, v17")
    A("  s_nop 1")
    for k in range(8):
        A("  v_readlane_b32 s%d, v18, %d" % (60 + k, 2 * k))
    A("  s_nop 1")
    for j in range(8):
        A("  s_waitcnt vmcnt(%d)" % (14 - 2 * j))
        r0 = wbase + 4 * j
        r1 = r0 + 2
        for c in range(2):
            A("  v_perm_b32 v6, v%d, v%d, s38" % (r1 + c, r0 + c))
            A("  v_perm_b32 v7, v%d, v%d, s39" % (r1 + c, r0 + c))
            A("  v_dot2c_f32_bf16 v%d, s%d, v6" % (12 + 2 * c, 60 + j))
            A("  v_dot2c_f32_bf16 v%d, s%d, v7" % (12 + 2 * c + 1, 60 + j))
    A("  s_nop 3")
    for k in range(4):
        A("  v_min_u32 v%d, -2, v%d" % (12 + k, 12 + k))
    A("  buffer_store_dwordx4 v[12:15], v4, s[28:31], 0 offen sc1")
    A("  s_endpgm")
    A("L_reducer:")
    A("  s_cmp_ge_u32 s2, 256")
    A("  s_cbranch_scc1 L_end")
    A("  s_sub_u32 s32, s2, 224")
    A("  s_mul_i32 s33, s32, 28672")
    A("  v_lshlrev_b32 v1, 4, v0")
    A("  v_add_u32 v1, s33, v1")
    A("  v_and_b32 v2, 63, v0")
    A("  v_lshlrev_b32 v2, 2, v2")
    for j in range(1, 7):
        A("  s_movk_i32 s%d, %d" % (48 + j, j * 4096))
    A("  s_mov_b32 s34, 0x01010101")
    A("  s_mov_b32 s35, 200000")
    A("  s_mov_b32 exec_lo, -1")
    A("  s_mov_b32 exec_hi, 0x00ffffff")
    A("  s_waitcnt lgkmcnt(0)")
    A("L_pollflag:")
    A("  buffer_load_dword v3, v2, s[24:27], 0 offen sc1")
    A("  s_waitcnt vmcnt(0)")
    A("  v_cmp_ne_u32 vcc, s34, v3")
    A("  s_cbranch_vccz L_flagsok")
    A("  s_sleep 2")
    A("  s_sub_u32 s35, s35, 1")
    A("  s_cmp_eq_u32 s35, 0")
    A("  s_cbranch_scc1 L_end")
    A("  s_branch L_pollflag")
    A("L_flagsok:")
    A("  s_mov_b64 exec, -1")
    A("L_poll1:")
    A("  buffer_load_dwordx4 v[4:7], v1, s[28:31], 0 offen sc1")
    A("  s_waitcnt vmcnt(0)")
    A("  v_max3_u32 v3, v4, v5, v6")
    A("  v_max_u32 v3, v3, v7")
    A("  v_cmp_eq_u32 vcc, -1, v3")
    A("  s_cbranch_vccz L_poll2")
    A("  s_sleep 1")
    A("  s_sub_u32 s35, s35, 1")
    A("  s_cmp_eq_u32 s35, 0")
    A("  s_cbranch_scc1 L_end")
    A("  s_branch L_poll1")
    A("L_poll2:")
    A("  s_sub_u32 s35, s35, 1")
    A("  s_cmp_eq_u32 s35, 0")
    A("  s_cbranch_scc1 L_end")
    for i in range(1, 7):
        A("  buffer_load_dwordx4 v[%d:%d], v1, s[28:31], s%d offen sc1" % (4 + 4 * i, 7 + 4 * i, 48 + i))
    A("  s_waitcnt vmcnt(0)")
    A("  v_max3_u32 v3, v8, v9, v10")
    for q in range(11, 31, 2):
        A("  v_max3_u32 v3, v3, v%d, v%d" % (q, q + 1))
    A("  v_max_u32 v3, v3, v31")
    A("  v_cmp_eq_u32 vcc, -1, v3")
    A("  s_cbranch_vccnz L_poll2")
    for i in range(1, 7):
        for c in range(4):
            A("  v_add_f32 v%d, v%d, v%d" % (4 + c, 4 + c, 4 + 4 * i + c))
    A("  s_nop 1")
    A("  v_permlane32_swap_b32 v4, v6")
    A("  v_permlane32_swap_b32 v5, v7")
    A("  s_nop 1")
    A("  v_add_f32 v4, v4, v6")
    A("  v_add_f32 v5, v5, v7")
    A("  s_nop 1")
    A("  v_permlane16_swap_b32 v4, v5")
    A("  s_nop 1")
    A("  v_add_f32 v4, v4, v5")
    A("  s_nop 1")
    A("  v_add_f32_dpp v4, v4, v4 row_ror:8 row_mask:0xf bank_mask:0xf")
    A("  v_lshrrev_b32 v5, 6, v0")
    A("  v_lshlrev_b32 v5, 7, v5")
    A("  v_and_b32 v6, 7, v0")
    A("  v_lshl_add_u32 v5, v6, 4, v5")
    A("  v_bfe_u32 v6, v0, 4, 2")
    A("  v_lshl_add_u32 v5, v6, 2, v5")
    A("  ds_write_b32 v5, v4")
    A("  s_waitcnt lgkmcnt(0)")
    A("  s_barrier")
    A("  v_cmp_gt_u32 vcc, 32, v0")
    A("  s_and_saveexec_b64 s[56:57], vcc")
    A("  s_cbranch_execz L_end")
    A("  v_lshlrev_b32 v6, 2, v0")
    A("  ds_read2_b32 v[8:9], v6 offset0:0 offset1:32")
    A("  ds_read2_b32 v[10:11], v6 offset0:64 offset1:96")
    A("  s_lshl_b32 s33, s32, 6")
    A("  v_lshlrev_b32 v7, 1, v0")
    A("  v_add_u32 v7, s33, v7")
    A("  s_waitcnt lgkmcnt(0)")
    A("  v_add_f32 v8, v8, v9")
    A("  v_add_f32 v10, v10, v11")
    A("  v_add_f32 v8, v8, v10")
    A("  v_cvt_pk_bf16_f32 v8, v8, v8")
    A("  buffer_store_short v8, v7, s[20:23], 0 offen")
    A("L_end:")
    A("  s_endpgm")
    A('.section .rodata,"a"')
    A(".p2align 6")
    A(".amdhsa_kernel %s_kernel" % NAME)
    A("  .amdhsa_next_free_vgpr 132")
    A("  .amdhsa_next_free_sgpr 72")
    A("  .amdhsa_accum_offset 132")
    A("  .amdhsa_group_segment_fixed_size 0")
    A("  .amdhsa_kernarg_size 56")
    A("  .amdhsa_user_sgpr_count 2")
    A("  .amdhsa_user_sgpr_kernarg_segment_ptr 1")
    A("  .amdhsa_system_sgpr_workgroup_id_x 1")
    A("  .amdhsa_float_denorm_mode_32 3")
    A(".end_amdhsa_kernel")
    return "\n".join(o) + "\n"

if __name__ == "__main__":
    out = sys.argv[1]
    kw = {}
    for a in sys.argv[2:]:
        k, v = a.split("=")
        kw[k] = bool(int(v))
    open(out, "w").write(gen(**kw))
```

```python
import sys
NAME = "standalone__glu_gated_bilinear__decode"
HDR = open('cdna_kernels/%s.s.ref' % NAME).read().split('; Override launch')[0]
MB1 = 917504
WSZ = 917504 + 114688

def gen(stamps=0, pol="nt", chkwave=2, hsleep=0, psleep=0, stampwave=0):
    o = []
    A = o.append
    pol = "" if pol == "x" else " " + pol.replace("_", " ")
    def ST(k):
        if stamps:
            A("  s_memrealtime s[%d:%d]" % (72 + 2 * k, 73 + 2 * k))
    def STOUT(lo, hi):
        if not stamps:
            return
        A("  s_waitcnt lgkmcnt(0)")
        A("  s_mov_b32 s30, 0x10000000")
        A("  s_mov_b64 exec, 1")
        A("  s_lshl_b32 s33, s2, 7")
        A("  s_add_u32 s33, s33, 0x8000000")
        A("  v_mov_b32 v5, s33")
        for k in range(lo, hi):
            A("  v_mov_b32 v6, s%d" % (72 + 2 * k))
            A("  v_mov_b32 v7, s%d" % (73 + 2 * k))
            A("  buffer_store_dwordx2 v[6:7], v5, s[28:31], 0 offen offset:%d" % (8 * k))
            A("  s_nop 1")
    A(HDR.rstrip('\n'))
    A("; @launch grid=(256,1,1) block=(512,1,1) lds=4096")
    A('.amdgcn_target "amdgcn-amd-amdhsa--gfx950"')
    A(".text")
    A(".globl %s_kernel" % NAME)
    A(".p2align 8")
    A(".type %s_kernel,@function" % NAME)
    A("%s_kernel:" % NAME)
    ST(0)
    A("  s_load_dwordx2 s[4:5], s[0:1], 0")
    A("  s_load_dwordx2 s[8:9], s[0:1], 8")
    A("  s_load_dwordx2 s[12:13], s[0:1], 16")
    A("  s_load_dwordx2 s[16:17], s[0:1], 24")
    A("  s_load_dwordx2 s[20:21], s[0:1], 32")
    A("  s_load_dwordx2 s[24:25], s[0:1], 40")
    A("  s_load_dwordx2 s[28:29], s[0:1], 48")
    A("  v_readfirstlane_b32 s3, v0")
    A("  s_movk_i32 s6, 2048")
    A("  s_mov_b32 s7, 0x20000")
    A("  s_mov_b32 s10, 7340032")
    A("  s_mov_b32 s11, 0x20000")
    A("  s_mov_b32 s14, 7340032")
    A("  s_mov_b32 s15, 0x20000")
    A("  s_mov_b32 s18, 7340032")
    A("  s_mov_b32 s19, 0x20000")
    A("  s_movk_i32 s22, 2048")
    A("  s_mov_b32 s23, 0x20000")
    A("  s_movk_i32 s26, 256")
    A("  s_mov_b32 s27, 0x20000")
    A("  s_mov_b32 s30, %d" % WSZ)
    A("  s_mov_b32 s31, 0x20000")
    A("  s_lshr_b32 s3, s3, 6")
    A("  s_mov_b32 s35, 100000")
    A("  s_mov_b32 s38, 0x05040100")
    A("  s_mov_b32 s39, 0x07060302")
    A("  s_cmp_ge_u32 s2, 224")
    A("  s_cbranch_scc1 L_helper")
    A("  s_and_b32 s32, s2, 7")
    A("  s_lshr_b32 s33, s2, 5")
    A("  s_lshl_b32 s33, s33, 3")
    A("  s_add_u32 s33, s33, s32")
    A("  s_lshr_b32 s34, s2, 3")
    A("  s_and_b32 s34, s34, 3")
    A("  s_cmp_ge_u32 s3, 4")
    A("  s_cbranch_scc1 L_ph2")
    A("  s_mul_i32 s36, s34, %d" % (256 * 7168))
    A("  s_lshl_b32 s37, s33, 7")
    A("  s_add_u32 s36, s36, s37")
    A("  v_lshrrev_b32 v2, 3, v0")
    A("  s_mov_b32 s37, 57344")
    A("  v_mul_lo_u32 v1, v2, s37")
    A("  v_and_b32 v3, 7, v0")
    A("  v_lshlrev_b32 v3, 4, v3")
    A("  v_add3_u32 v1, v1, v3, s36")
    A("  s_lshl_b32 s37, s34, 9")
    A("  v_lshl_add_u32 v2, v2, 4, s37")
    for i in range(1, 8):
        A("  s_mov_b32 s%d, %d" % (40 + i, i * 7168))
    for k in range(16):
        A("  v_mov_b32 v%d, 0" % (16 + k))
    A("  s_waitcnt lgkmcnt(0)")
    ST(1)
    A("  buffer_load_dwordx4 v[32:35], v2, s[4:7], 0 offen")
    base = 36
    def so(i): return "0" if i == 0 else "s%d" % (40 + i)
    for k in range(4):
        for m, srd in ((0, "s[8:11]"), (1, "s[12:15]")):
            for rr in range(2):
                reg = base + (k * 4 + m * 2 + rr) * 4
                A("  buffer_load_dwordx4 v[%d:%d], v1, %s, %s offen%s" % (reg, reg + 3, srd, so(2 * k + rr), pol))
    A("  v_lshrrev_b32 v5, 6, v0")
    A("  v_lshlrev_b32 v5, 9, v5")
    A("  v_bfe_u32 v6, v0, 5, 1")
    A("  v_lshl_add_u32 v5, v6, 8, v5")
    A("  v_lshl_add_u32 v5, v3, 1, v5")
    A("  v_bfe_u32 v6, v0, 4, 1")
    A("  v_lshl_add_u32 v5, v6, 4, v5")
    A("  v_bfe_u32 v6, v0, 2, 1")
    A("  v_lshlrev_b32 v8, 8, v6")
    A("  v_bfe_u32 v6, v0, 3, 2")
    A("  v_lshl_add_u32 v8, v6, 6, v8")
    A("  v_and_b32 v7, 3, v0")
    A("  v_lshl_add_u32 v8, v7, 4, v8")
    A("  s_lshl_b32 s36, s33, 11")
    A("  s_lshl_b32 s37, s34, 7")
    A("  s_add_u32 s37, s37, s36")
    A("  s_add_u32 s37, s37, %d" % MB1)
    A("  v_lshl_add_u32 v9, v6, 9, v3")
    A("  v_add_u32 v9, s37, v9")
    A("  s_lshl_b32 s37, s34, 9")
    A("  s_add_u32 s37, s37, s36")
    A("  s_add_u32 s37, s37, %d" % MB1)
    A("  v_and_b32 v10, 31, v0")
    A("  v_lshlrev_b32 v11, 3, v10")
    A("  v_lshlrev_b32 v10, 4, v10")
    A("  v_add_u32 v10, s37, v10")
    ST(2)
    for k in range(4):
        A("  s_waitcnt vmcnt(%d)" % (12 - 4 * k))
        for m in range(2):
            r0 = base + (k * 4 + m * 2) * 4
            r1 = r0 + 4
            acc = 16 + m * 8
            for c in range(4):
                A("  v_perm_b32 v6, v%d, v%d, s38" % (r1 + c, r0 + c))
                A("  v_perm_b32 v7, v%d, v%d, s39" % (r1 + c, r0 + c))
                A("  v_dot2c_f32_bf16 v%d, v%d, v6" % (acc + 2 * c, 32 + k))
                A("  v_dot2c_f32_bf16 v%d, v%d, v7" % (acc + 2 * c + 1, 32 + k))
    ST(3)
    A("  s_nop 3")
    for k in range(8):
        A("  v_permlane32_swap_b32 v%d, v%d" % (16 + k, 24 + k))
    A("  s_nop 1")
    for k in range(8):
        A("  v_add_f32 v%d, v%d, v%d" % (16 + k, 16 + k, 24 + k))
    for k in range(4):
        A("  v_permlane16_swap_b32 v%d, v%d" % (16 + k, 20 + k))
    A("  s_nop 1")
    for k in range(4):
        A("  v_add_f32 v%d, v%d, v%d" % (16 + k, 16 + k, 20 + k))
    A("  s_nop 1")
    for k in range(4):
        A("  v_add_f32_dpp v%d, v%d, v%d row_ror:8 row_mask:0xf bank_mask:0xf" % (16 + k, 16 + k, 16 + k))
    A("  s_mov_b32 exec_lo, 0x00ff00ff")
    A("  s_mov_b32 exec_hi, 0x00ff00ff")
    A("  ds_write_b128 v5, v[16:19]")
    A("  s_mov_b32 exec_lo, -1")
    A("  s_mov_b32 exec_hi, 0")
    A("  s_cmp_lg_u32 s3, %d" % chkwave)
    A("  s_cbranch_scc1 L_nochk")
    A("L_chk:")
    A("  buffer_load_dword v12, v11, s[24:27], 0 offen sc1")
    A("  s_waitcnt vmcnt(0)")
    A("  v_cmp_ne_u32 vcc, 1, v12")
    A("  s_cbranch_vccz L_nochk")
    A("  s_sleep 4")
    A("  s_sub_u32 s35, s35, 1")
    A("  s_cmp_eq_u32 s35, 0")
    A("  s_cbranch_scc0 L_chk")
    A("L_nochk:")
    A("  s_waitcnt lgkmcnt(0)")
    A("  s_barrier")
    A("  s_cmp_lg_u32 s3, 0")
    A("  s_cbranch_scc1 L_end")
    ST(4)
    for w in range(4):
        A("  ds_read_b128 v[%d:%d], v8 offset:%d" % (16 + 4 * w, 19 + 4 * w, w * 512))
    A("  s_waitcnt lgkmcnt(%d)" % (0 if stamps else 2))
    for c in range(4):
        A("  v_add_f32 v%d, v%d, v%d" % (16 + c, 16 + c, 20 + c))
    A("  s_waitcnt lgkmcnt(0)")
    for c in range(4):
        A("  v_add_f32 v%d, v%d, v%d" % (24 + c, 24 + c, 28 + c))
    for c in range(4):
        A("  v_add_f32 v%d, v%d, v%d" % (16 + c, 16 + c, 24 + c))
    for c in range(4):
        A("  v_min_u32 v%d, -2, v%d" % (16 + c, 16 + c))
    A("  buffer_store_dwordx4 v[16:19], v9, s[28:31], 0 offen sc1")
    ST(5)
    A("L_poll1:")
    A("  buffer_load_dwordx4 v[20:23], v10, s[28:31], 0 offen sc1")
    A("  s_waitcnt vmcnt(0)")
    A("  v_max3_u32 v12, v20, v21, v22")
    A("  v_max_u32 v12, v12, v23")
    A("  v_cmp_eq_u32 vcc, -1, v12")
    A("  s_cbranch_vccz L_got1")
    if psleep:
        A("  s_sleep %d" % psleep)
    A("  s_sub_u32 s35, s35, 1")
    A("  s_cmp_eq_u32 s35, 0")
    A("  s_cbranch_scc0 L_poll1")
    A("L_got1:")
    ST(6)
    A("  s_mov_b64 exec, -1")
    A("  s_nop 4")
    for c in range(4):
        A("  v_add_f32_dpp v%d, v%d, v%d row_ror:8 row_mask:0xf bank_mask:0xf" % (20 + c, 20 + c, 20 + c))
    for c in range(4):
        A("  v_mov_b32 v%d, v%d" % (24 + c, 20 + c))
    A("  s_nop 1")
    for c in range(4):
        A("  v_permlane16_swap_b32 v%d, v%d" % (20 + c, 24 + c))
    A("  s_nop 1")
    for c in range(4):
        A("  v_add_f32 v%d, v%d, v%d" % (20 + c, 20 + c, 24 + c))
    A("  v_cvt_pk_bf16_f32 v24, v20, v21")
    A("  v_cvt_pk_bf16_f32 v25, v22, v23")
    A("  s_nop 1")
    A("  v_mov_b32_dpp v26, v24 row_shl:4 row_mask:0xf bank_mask:0xf")
    A("  v_mov_b32_dpp v27, v25 row_shl:4 row_mask:0xf bank_mask:0xf")
    A("  v_lshlrev_b32 v20, 16, v24")
    A("  v_and_b32 v21, 0xffff0000, v24")
    A("  v_lshlrev_b32 v22, 16, v25")
    A("  v_and_b32 v23, 0xffff0000, v25")
    A("  v_lshlrev_b32 v28, 16, v26")
    A("  v_and_b32 v29, 0xffff0000, v26")
    A("  v_lshlrev_b32 v30, 16, v27")
    A("  v_and_b32 v31, 0xffff0000, v27")
    for c in range(4):
        A("  v_mul_f32 v%d, v%d, v%d" % (20 + c, 20 + c, 28 + c))
    A("  v_cvt_pk_bf16_f32 v24, v20, v21")
    A("  v_cvt_pk_bf16_f32 v25, v22, v23")
    A("  v_lshlrev_b32 v12, 3, v0")
    A("  s_mov_b64 exec, 15")
    A("  ds_write_b64 v12, v[24:25] offset:2048")
    A("  s_waitcnt lgkmcnt(0)")
    ST(7)
    A("  s_barrier")
    STOUT(0, 8)
    A("  s_endpgm")
    A("L_ph2:")
    A("  s_lshl_b32 s36, s33, 17")
    A("  s_lshl_b32 s37, s34, 15")
    A("  s_add_u32 s36, s36, s37")
    A("  v_and_b32 v2, 255, v0")
    A("  v_lshlrev_b32 v3, 3, v2")
    A("  v_add_u32 v3, s36, v3")
    for j in range(1, 8):
        A("  s_movk_i32 s%d, %d" % (48 + j, j * 4096))
    A("  v_lshrrev_b32 v4, 3, v2")
    A("  s_movk_i32 s37, 28672")
    A("  v_mul_lo_u32 v4, v4, s37")
    A("  v_and_b32 v5, 7, v2")
    A("  v_lshlrev_b32 v5, 4, v5")
    A("  s_lshl_b32 s37, s2, 7")
    A("  v_add3_u32 v4, v4, v5, s37")
    for k in range(4):
        A("  v_mov_b32 v%d, 0" % (12 + k))
    A("  v_mov_b32 v6, 2048")
    A("  s_waitcnt lgkmcnt(0)")
    wbase = 32
    for j in range(16):
        reg = wbase + j * 2
        sof = "0" if j // 2 == 0 else "s%d" % (48 + j // 2)
        A("  buffer_load_dwordx2 v[%d:%d], v3, s[16:19], %s offen offset:%d%s" % (reg, reg + 1, sof, (j % 2) * 2048, pol))
    ST(8)
    A("  s_barrier")
    pbase = 64
    for j in range(8):
        A("  s_waitcnt vmcnt(%d)" % (14 - 2 * j))
        r0 = wbase + 4 * j
        r1 = r0 + 2
        for c in range(2):
            A("  v_perm_b32 v%d, v%d, v%d, s38" % (pbase + 4 * j + 2 * c, r1 + c, r0 + c))
            A("  v_perm_b32 v%d, v%d, v%d, s39" % (pbase + 4 * j + 2 * c + 1, r1 + c, r0 + c))
    ST(9)
    A("  s_barrier")
    A("  ds_read_b128 v[16:19], v6")
    A("  ds_read_b128 v[20:23], v6 offset:16")
    A("  s_waitcnt lgkmcnt(%d)" % (0 if stamps else 1))
    for j in range(8):
        if j == 4:
            A("  s_waitcnt lgkmcnt(0)")
        for c in range(4):
            A("  v_dot2c_f32_bf16 v%d, v%d, v%d" % (12 + c, 16 + j, pbase + 4 * j + c))
    A("  s_nop 3")
    for k in range(4):
        A("  v_min_u32 v%d, -2, v%d" % (12 + k, 12 + k))
    A("  buffer_store_dwordx4 v[12:15], v4, s[28:31], 0 offen sc1")
    if stamps:
        ST(10)
        A("  s_waitcnt vmcnt(0)")
        ST(11)
        A("  s_cmp_lg_u32 s3, 7")
        A("  s_cbranch_scc1 L_end")
        STOUT(8, 12)
    A("  s_endpgm")
    A("L_helper:")
    A("  s_cmp_ge_u32 s2, 256")
    A("  s_cbranch_scc1 L_end")
    A("  s_sub_u32 s32, s2, 224")
    A("  v_mov_b32 v8, -1")
    A("  v_mov_b32 v9, -1")
    A("  v_mov_b32 v10, -1")
    A("  v_mov_b32 v11, -1")
    A("  v_and_b32 v2, 63, v0")
    A("  v_lshlrev_b32 v2, 4, v2")
    A("  s_cmp_eq_u32 s3, 7")
    A("  s_cbranch_scc1 L_h7")
    A("  s_mul_i32 s33, s32, 28672")
    A("  s_lshl_b32 s34, s3, 12")
    A("  s_add_u32 s33, s33, s34")
    A("  v_add_u32 v1, s33, v2")
    A("  s_waitcnt lgkmcnt(0)")
    ST(1)
    for i in range(4):
        A("  buffer_store_dwordx4 v[8:11], v1, s[28:31], 0 offen offset:%d sc1" % (i * 1024))
    A("  s_waitcnt vmcnt(0)")
    ST(2)
    A("  s_barrier")
    A("L_hpoll:")
    for i in range(4):
        A("  buffer_load_dwordx4 v[%d:%d], v1, s[28:31], 0 offen offset:%d sc1" % (12 + 4 * i, 15 + 4 * i, i * 1024))
    A("  s_waitcnt vmcnt(0)")
    A("  v_max3_u32 v3, v12, v13, v14")
    for q in range(15, 27, 2):
        A("  v_max3_u32 v3, v3, v%d, v%d" % (q, q + 1))
    A("  v_max_u32 v3, v3, v27")
    A("  v_cmp_eq_u32 vcc, -1, v3")
    A("  s_cbranch_vccz L_hgot")
    if hsleep:
        A("  s_sleep %d" % hsleep)
    A("  s_sub_u32 s35, s35, 1")
    A("  s_cmp_eq_u32 s35, 0")
    A("  s_cbranch_scc0 L_hpoll")
    A("L_hgot:")
    ST(3)
    for c in range(4):
        A("  v_add_f32 v%d, v%d, v%d" % (12 + c, 12 + c, 16 + c))
        A("  v_add_f32 v%d, v%d, v%d" % (20 + c, 20 + c, 24 + c))
    for c in range(4):
        A("  v_add_f32 v%d, v%d, v%d" % (12 + c, 12 + c, 20 + c))
    A("  s_nop 1")
    A("  v_permlane32_swap_b32 v12, v14")
    A("  v_permlane32_swap_b32 v13, v15")
    A("  s_nop 1")
    A("  v_add_f32 v12, v12, v14")
    A("  v_add_f32 v13, v13, v15")
    A("  s_nop 1")
    A("  v_permlane16_swap_b32 v12, v13")
    A("  s_nop 1")
    A("  v_add_f32 v12, v12, v13")
    A("  s_nop 1")
    A("  v_add_f32_dpp v12, v12, v12 row_ror:8 row_mask:0xf bank_mask:0xf")
    A("  v_lshrrev_b32 v5, 6, v0")
    A("  v_lshlrev_b32 v5, 7, v5")
    A("  v_and_b32 v6, 7, v0")
    A("  v_lshl_add_u32 v5, v6, 4, v5")
    A("  v_bfe_u32 v6, v0, 4, 2")
    A("  v_lshl_add_u32 v5, v6, 2, v5")
    A("  ds_write_b32 v5, v12")
    A("  s_waitcnt lgkmcnt(0)")
    A("  s_barrier")
    A("  s_cmp_lg_u32 s3, 0")
    A("  s_cbranch_scc1 L_end")
    A("  s_mov_b32 exec_hi, 0")
    A("  v_lshlrev_b32 v6, 2, v0")
    A("  ds_read2_b32 v[8:9], v6 offset0:0 offset1:32")
    A("  ds_read2_b32 v[10:11], v6 offset0:64 offset1:96")
    A("  ds_read2_b32 v[12:13], v6 offset0:128 offset1:160")
    A("  ds_read_b32 v14, v6 offset:768")
    A("  s_lshl_b32 s33, s32, 6")
    A("  v_lshlrev_b32 v7, 1, v0")
    A("  v_add_u32 v7, s33, v7")
    A("  s_waitcnt lgkmcnt(0)")
    A("  v_add_f32 v8, v8, v9")
    A("  v_add_f32 v10, v10, v11")
    A("  v_add_f32 v12, v12, v13")
    A("  v_add_f32 v8, v8, v14")
    A("  v_add_f32 v10, v10, v12")
    A("  v_add_f32 v8, v8, v10")
    A("  v_cvt_pk_bf16_f32 v8, v8, v8")
    A("  buffer_store_short v8, v7, s[20:23], 0 offen")
    if stamps:
        ST(4)
        A("  s_waitcnt vmcnt(0)")
        ST(5)
        STOUT(0, 6)
    A("  s_endpgm")
    A("L_h7:")
    A("  s_mul_i32 s33, s32, 3584")
    A("  s_add_u32 s33, s33, %d" % MB1)
    A("  v_add_u32 v1, s33, v2")
    A("  s_lshl_b32 s34, s32, 3")
    A("  v_mov_b32 v3, s34")
    A("  v_mov_b32 v4, 1")
    A("  s_mov_b32 exec_hi, 0x00ffffff")
    A("  s_waitcnt lgkmcnt(0)")
    for i in range(4):
        A("  buffer_store_dwordx4 v[8:11], v1, s[28:31], 0 offen offset:%d sc1" % (i * 896))
    A("  s_waitcnt vmcnt(0)")
    A("  s_barrier")
    A("  s_mov_b64 exec, 1")
    A("  buffer_store_dword v4, v3, s[24:27], 0 offen sc1")
    if stamps:
        A("  s_waitcnt vmcnt(0)")
        ST(6)
        STOUT(6, 7)
    A("L_end:")
    A("  s_endpgm")
    A('.section .rodata,"a"')
    A(".p2align 6")
    A(".amdhsa_kernel %s_kernel" % NAME)
    A("  .amdhsa_next_free_vgpr 100")
    A("  .amdhsa_next_free_sgpr 100")
    A("  .amdhsa_accum_offset 100")
    A("  .amdhsa_group_segment_fixed_size 0")
    A("  .amdhsa_kernarg_size 56")
    A("  .amdhsa_user_sgpr_count 2")
    A("  .amdhsa_user_sgpr_kernarg_segment_ptr 1")
    A("  .amdhsa_system_sgpr_workgroup_id_x 1")
    A("  .amdhsa_float_denorm_mode_32 3")
    A(".end_amdhsa_kernel")
    return "\n".join(o) + "\n"

if __name__ == "__main__":
    out = sys.argv[1]
    kw = {}
    for a in sys.argv[2:]:
        k, v = a.split("=")
        kw[k] = int(v) if v.isdigit() else v
    open(out, "w").write(gen(**kw))
```

```python
import sys
NAME = "standalone__glu_gated_bilinear__decode"
HDR = open('cdna_kernels/%s.s.ref' % NAME).read().split('; Override launch')[0]
MB1 = 917504
WSZ = 917504 + 114688

def gen(stamps=0, pol="nt", chkwave=2, hsleep=0, psleep=0, stampwave=0):
    o = []
    A = o.append
    pol = "" if pol == "x" else " " + pol.replace("_", " ")
    def ST(k):
        if stamps:
            A("  s_memrealtime s[%d:%d]" % (72 + 2 * k, 73 + 2 * k))
    def STOUT(lo, hi, off=0):
        if not stamps:
            return
        if stamps == 2:
            A("  s_waitcnt lgkmcnt(0)")
            A("  s_mov_b64 exec, 1")
            A("  v_mov_b32 v5, 0")
            for k in range(lo, hi):
                kk = k + off
                if k == 0:
                    A("  s_not_b32 s33, s72")
                    A("  v_mov_b32 v6, s33")
                    kk = 0
                else:
                    A("  v_mov_b32 v6, s%d" % (72 + 2 * k))
                if kk < 16:
                    A("  buffer_atomic_umax v6, v5, s[24:27], 0 offen offset:%d sc1" % (4 * kk))
                    A("  s_nop 1")
            return
        A("  s_waitcnt lgkmcnt(0)")
        A("  s_mov_b32 s30, 0x10000000")
        A("  s_mov_b64 exec, 1")
        A("  s_lshl_b32 s33, s2, 7")
        A("  s_add_u32 s33, s33, 0x8000000")
        A("  v_mov_b32 v5, s33")
        for k in range(lo, hi):
            A("  v_mov_b32 v6, s%d" % (72 + 2 * k))
            A("  v_mov_b32 v7, s%d" % (73 + 2 * k))
            A("  buffer_store_dwordx2 v[6:7], v5, s[28:31], 0 offen offset:%d" % (8 * k))
            A("  s_nop 1")
    A(HDR.rstrip('\n'))
    A("; @launch grid=(256,1,1) block=(512,1,1) lds=4096")
    A('.amdgcn_target "amdgcn-amd-amdhsa--gfx950"')
    A(".text")
    A(".globl %s_kernel" % NAME)
    A(".p2align 8")
    A(".type %s_kernel,@function" % NAME)
    A("%s_kernel:" % NAME)
    ST(0)
    A("  s_load_dwordx2 s[4:5], s[0:1], 0")
    A("  s_load_dwordx2 s[8:9], s[0:1], 8")
    A("  s_load_dwordx2 s[12:13], s[0:1], 16")
    A("  s_load_dwordx2 s[16:17], s[0:1], 24")
    A("  s_load_dwordx2 s[20:21], s[0:1], 32")
    A("  s_load_dwordx2 s[24:25], s[0:1], 40")
    A("  s_load_dwordx2 s[28:29], s[0:1], 48")
    A("  v_readfirstlane_b32 s3, v0")
    A("  s_movk_i32 s6, 2048")
    A("  s_mov_b32 s7, 0x20000")
    A("  s_mov_b32 s10, 7340032")
    A("  s_mov_b32 s11, 0x20000")
    A("  s_mov_b32 s14, 7340032")
    A("  s_mov_b32 s15, 0x20000")
    A("  s_mov_b32 s18, 7340032")
    A("  s_mov_b32 s19, 0x20000")
    A("  s_movk_i32 s22, 2048")
    A("  s_mov_b32 s23, 0x20000")
    A("  s_movk_i32 s26, 256")
    A("  s_mov_b32 s27, 0x20000")
    A("  s_mov_b32 s30, %d" % WSZ)
    A("  s_mov_b32 s31, 0x20000")
    A("  s_lshr_b32 s3, s3, 6")
    A("  s_mov_b32 s35, 100000")
    A("  s_mov_b32 s38, 0x05040100")
    A("  s_mov_b32 s39, 0x07060302")
    A("  s_cmp_ge_u32 s2, 224")
    A("  s_cbranch_scc1 L_helper")
    A("  s_and_b32 s32, s2, 7")
    A("  s_lshr_b32 s33, s2, 5")
    A("  s_lshl_b32 s33, s33, 3")
    A("  s_add_u32 s33, s33, s32")
    A("  s_lshr_b32 s34, s2, 3")
    A("  s_and_b32 s34, s34, 3")
    A("  s_cmp_ge_u32 s3, 4")
    A("  s_cbranch_scc1 L_ph2")
    A("  s_mul_i32 s36, s34, %d" % (256 * 7168))
    A("  s_lshl_b32 s37, s33, 7")
    A("  s_add_u32 s36, s36, s37")
    A("  v_lshrrev_b32 v2, 3, v0")
    A("  s_mov_b32 s37, 57344")
    A("  v_mul_lo_u32 v1, v2, s37")
    A("  v_and_b32 v3, 7, v0")
    A("  v_lshlrev_b32 v3, 4, v3")
    A("  v_add3_u32 v1, v1, v3, s36")
    A("  s_lshl_b32 s37, s34, 9")
    A("  v_lshl_add_u32 v2, v2, 4, s37")
    for i in range(1, 8):
        A("  s_mov_b32 s%d, %d" % (40 + i, i * 7168))
    for k in range(16):
        A("  v_mov_b32 v%d, 0" % (16 + k))
    A("  s_waitcnt lgkmcnt(0)")
    ST(1)
    A("  buffer_load_dwordx4 v[32:35], v2, s[4:7], 0 offen")
    base = 36
    def so(i): return "0" if i == 0 else "s%d" % (40 + i)
    for k in range(4):
        for m, srd in ((0, "s[8:11]"), (1, "s[12:15]")):
            for rr in range(2):
                reg = base + (k * 4 + m * 2 + rr) * 4
                A("  buffer_load_dwordx4 v[%d:%d], v1, %s, %s offen%s" % (reg, reg + 3, srd, so(2 * k + rr), pol))
    A("  v_lshrrev_b32 v5, 6, v0")
    A("  v_lshlrev_b32 v5, 9, v5")
    A("  v_bfe_u32 v6, v0, 5, 1")
    A("  v_lshl_add_u32 v5, v6, 8, v5")
    A("  v_lshl_add_u32 v5, v3, 1, v5")
    A("  v_bfe_u32 v6, v0, 4, 1")
    A("  v_lshl_add_u32 v5, v6, 4, v5")
    A("  v_bfe_u32 v6, v0, 2, 1")
    A("  v_lshlrev_b32 v8, 8, v6")
    A("  v_bfe_u32 v6, v0, 3, 2")
    A("  v_lshl_add_u32 v8, v6, 6, v8")
    A("  v_and_b32 v7, 3, v0")
    A("  v_lshl_add_u32 v8, v7, 4, v8")
    A("  s_lshl_b32 s36, s33, 11")
    A("  s_lshl_b32 s37, s34, 7")
    A("  s_add_u32 s37, s37, s36")
    A("  s_add_u32 s37, s37, %d" % MB1)
    A("  v_lshl_add_u32 v9, v6, 9, v3")
    A("  v_add_u32 v9, s37, v9")
    A("  s_lshl_b32 s37, s34, 9")
    A("  s_add_u32 s37, s37, s36")
    A("  s_add_u32 s37, s37, %d" % MB1)
    A("  v_and_b32 v10, 31, v0")
    A("  v_lshlrev_b32 v11, 2, v10")
    A("  v_add_u32 v11, 128, v11")
    A("  v_lshlrev_b32 v10, 4, v10")
    A("  v_add_u32 v10, s37, v10")
    ST(2)
    for k in range(4):
        A("  s_waitcnt vmcnt(%d)" % (12 - 4 * k))
        for m in range(2):
            r0 = base + (k * 4 + m * 2) * 4
            r1 = r0 + 4
            acc = 16 + m * 8
            for c in range(4):
                A("  v_perm_b32 v6, v%d, v%d, s38" % (r1 + c, r0 + c))
                A("  v_perm_b32 v7, v%d, v%d, s39" % (r1 + c, r0 + c))
                A("  v_dot2c_f32_bf16 v%d, v%d, v6" % (acc + 2 * c, 32 + k))
                A("  v_dot2c_f32_bf16 v%d, v%d, v7" % (acc + 2 * c + 1, 32 + k))
    ST(3)
    A("  s_nop 3")
    for k in range(8):
        A("  v_permlane32_swap_b32 v%d, v%d" % (16 + k, 24 + k))
    A("  s_nop 1")
    for k in range(8):
        A("  v_add_f32 v%d, v%d, v%d" % (16 + k, 16 + k, 24 + k))
    for k in range(4):
        A("  v_permlane16_swap_b32 v%d, v%d" % (16 + k, 20 + k))
    A("  s_nop 1")
    for k in range(4):
        A("  v_add_f32 v%d, v%d, v%d" % (16 + k, 16 + k, 20 + k))
    A("  s_nop 1")
    for k in range(4):
        A("  v_add_f32_dpp v%d, v%d, v%d row_ror:8 row_mask:0xf bank_mask:0xf" % (16 + k, 16 + k, 16 + k))
    A("  s_mov_b32 exec_lo, 0x00ff00ff")
    A("  s_mov_b32 exec_hi, 0x00ff00ff")
    A("  ds_write_b128 v5, v[16:19]")
    A("  s_mov_b32 exec_lo, -1")
    A("  s_mov_b32 exec_hi, 0")
    A("  s_cmp_lg_u32 s3, %d" % chkwave)
    A("  s_cbranch_scc1 L_nochk")
    A("L_chk:")
    A("  buffer_load_dword v12, v11, s[24:27], 0 offen sc1")
    A("  s_waitcnt vmcnt(0)")
    A("  v_cmp_ne_u32 vcc, 1, v12")
    A("  s_cbranch_vccz L_nochk")
    A("  s_sleep 4")
    A("  s_sub_u32 s35, s35, 1")
    A("  s_cmp_eq_u32 s35, 0")
    A("  s_cbranch_scc0 L_chk")
    A("L_nochk:")
    A("  s_waitcnt lgkmcnt(0)")
    A("  s_barrier")
    A("  s_cmp_lg_u32 s3, 0")
    A("  s_cbranch_scc1 L_end")
    ST(4)
    for w in range(4):
        A("  ds_read_b128 v[%d:%d], v8 offset:%d" % (16 + 4 * w, 19 + 4 * w, w * 512))
    A("  s_waitcnt lgkmcnt(%d)" % (0 if stamps else 2))
    for c in range(4):
        A("  v_add_f32 v%d, v%d, v%d" % (16 + c, 16 + c, 20 + c))
    A("  s_waitcnt lgkmcnt(0)")
    for c in range(4):
        A("  v_add_f32 v%d, v%d, v%d" % (24 + c, 24 + c, 28 + c))
    for c in range(4):
        A("  v_add_f32 v%d, v%d, v%d" % (16 + c, 16 + c, 24 + c))
    for c in range(4):
        A("  v_min_u32 v%d, -2, v%d" % (16 + c, 16 + c))
    A("  buffer_store_dwordx4 v[16:19], v9, s[28:31], 0 offen sc1")
    ST(5)
    A("L_poll1:")
    A("  buffer_load_dwordx4 v[20:23], v10, s[28:31], 0 offen sc1")
    A("  s_waitcnt vmcnt(0)")
    A("  v_max3_u32 v12, v20, v21, v22")
    A("  v_max_u32 v12, v12, v23")
    A("  v_cmp_eq_u32 vcc, -1, v12")
    A("  s_cbranch_vccz L_got1")
    if psleep:
        A("  s_sleep %d" % psleep)
    A("  s_sub_u32 s35, s35, 1")
    A("  s_cmp_eq_u32 s35, 0")
    A("  s_cbranch_scc0 L_poll1")
    A("L_got1:")
    ST(6)
    A("  s_mov_b64 exec, -1")
    A("  s_nop 4")
    for c in range(4):
        A("  v_add_f32_dpp v%d, v%d, v%d row_ror:8 row_mask:0xf bank_mask:0xf" % (20 + c, 20 + c, 20 + c))
    for c in range(4):
        A("  v_mov_b32 v%d, v%d" % (24 + c, 20 + c))
    A("  s_nop 1")
    for c in range(4):
        A("  v_permlane16_swap_b32 v%d, v%d" % (20 + c, 24 + c))
    A("  s_nop 1")
    for c in range(4):
        A("  v_add_f32 v%d, v%d, v%d" % (20 + c, 20 + c, 24 + c))
    A("  v_cvt_pk_bf16_f32 v24, v20, v21")
    A("  v_cvt_pk_bf16_f32 v25, v22, v23")
    A("  s_nop 1")
    A("  v_mov_b32_dpp v26, v24 row_shl:4 row_mask:0xf bank_mask:0xf")
    A("  v_mov_b32_dpp v27, v25 row_shl:4 row_mask:0xf bank_mask:0xf")
    A("  v_lshlrev_b32 v20, 16, v24")
    A("  v_and_b32 v21, 0xffff0000, v24")
    A("  v_lshlrev_b32 v22, 16, v25")
    A("  v_and_b32 v23, 0xffff0000, v25")
    A("  v_lshlrev_b32 v28, 16, v26")
    A("  v_and_b32 v29, 0xffff0000, v26")
    A("  v_lshlrev_b32 v30, 16, v27")
    A("  v_and_b32 v31, 0xffff0000, v27")
    for c in range(4):
        A("  v_mul_f32 v%d, v%d, v%d" % (20 + c, 20 + c, 28 + c))
    A("  v_cvt_pk_bf16_f32 v24, v20, v21")
    A("  v_cvt_pk_bf16_f32 v25, v22, v23")
    A("  v_lshlrev_b32 v12, 3, v0")
    A("  s_mov_b64 exec, 15")
    A("  ds_write_b64 v12, v[24:25] offset:2048")
    A("  s_waitcnt lgkmcnt(0)")
    ST(7)
    A("  s_barrier")
    STOUT(0, 8)
    A("  s_endpgm")
    A("L_ph2:")
    A("  s_lshl_b32 s36, s33, 17")
    A("  s_lshl_b32 s37, s34, 15")
    A("  s_add_u32 s36, s36, s37")
    A("  v_and_b32 v2, 255, v0")
    A("  v_lshlrev_b32 v3, 3, v2")
    A("  v_add_u32 v3, s36, v3")
    for j in range(1, 8):
        A("  s_movk_i32 s%d, %d" % (48 + j, j * 4096))
    A("  v_lshrrev_b32 v4, 3, v2")
    A("  s_movk_i32 s37, 28672")
    A("  v_mul_lo_u32 v4, v4, s37")
    A("  v_and_b32 v5, 7, v2")
    A("  v_lshlrev_b32 v5, 4, v5")
    A("  s_lshl_b32 s37, s2, 7")
    A("  v_add3_u32 v4, v4, v5, s37")
    for k in range(4):
        A("  v_mov_b32 v%d, 0" % (12 + k))
    A("  v_mov_b32 v6, 2048")
    A("  s_waitcnt lgkmcnt(0)")
    wbase = 32
    for j in range(16):
        reg = wbase + j * 2
        sof = "0" if j // 2 == 0 else "s%d" % (48 + j // 2)
        A("  buffer_load_dwordx2 v[%d:%d], v3, s[16:19], %s offen offset:%d%s" % (reg, reg + 1, sof, (j % 2) * 2048, pol))
    ST(8)
    A("  s_barrier")
    pbase = 64
    for j in range(8):
        A("  s_waitcnt vmcnt(%d)" % (14 - 2 * j))
        r0 = wbase + 4 * j
        r1 = r0 + 2
        for c in range(2):
            A("  v_perm_b32 v%d, v%d, v%d, s38" % (pbase + 4 * j + 2 * c, r1 + c, r0 + c))
            A("  v_perm_b32 v%d, v%d, v%d, s39" % (pbase + 4 * j + 2 * c + 1, r1 + c, r0 + c))
    ST(9)
    A("  s_barrier")
    A("  ds_read_b128 v[16:19], v6")
    A("  ds_read_b128 v[20:23], v6 offset:16")
    A("  s_waitcnt lgkmcnt(%d)" % (0 if stamps else 1))
    for j in range(8):
        if j == 4:
            A("  s_waitcnt lgkmcnt(0)")
        for c in range(4):
            A("  v_dot2c_f32_bf16 v%d, v%d, v%d" % (12 + c, 16 + j, pbase + 4 * j + c))
    A("  s_nop 3")
    for k in range(4):
        A("  v_min_u32 v%d, -2, v%d" % (12 + k, 12 + k))
    A("  buffer_store_dwordx4 v[12:15], v4, s[28:31], 0 offen sc1")
    if stamps:
        ST(10)
        A("  s_waitcnt vmcnt(0)")
        ST(11)
        A("  s_cmp_lg_u32 s3, 7")
        A("  s_cbranch_scc1 L_end")
        STOUT(8, 12)
    A("  s_endpgm")
    A("L_helper:")
    A("  s_cmp_ge_u32 s2, 256")
    A("  s_cbranch_scc1 L_end")
    A("  s_sub_u32 s32, s2, 224")
    A("  v_mov_b32 v8, -1")
    A("  v_mov_b32 v9, -1")
    A("  v_mov_b32 v10, -1")
    A("  v_mov_b32 v11, -1")
    A("  v_and_b32 v2, 63, v0")
    A("  v_lshlrev_b32 v2, 4, v2")
    A("  s_cmp_eq_u32 s3, 7")
    A("  s_cbranch_scc1 L_h7")
    A("  s_mul_i32 s33, s32, 28672")
    A("  s_lshl_b32 s34, s3, 12")
    A("  s_add_u32 s33, s33, s34")
    A("  v_add_u32 v1, s33, v2")
    A("  s_waitcnt lgkmcnt(0)")
    ST(1)
    for i in range(4):
        A("  buffer_store_dwordx4 v[8:11], v1, s[28:31], 0 offen offset:%d sc1" % (i * 1024))
    A("  s_waitcnt vmcnt(0)")
    ST(2)
    A("  s_barrier")
    A("L_hpoll:")
    for i in range(4):
        A("  buffer_load_dwordx4 v[%d:%d], v1, s[28:31], 0 offen offset:%d sc1" % (12 + 4 * i, 15 + 4 * i, i * 1024))
    A("  s_waitcnt vmcnt(0)")
    A("  v_max3_u32 v3, v12, v13, v14")
    for q in range(15, 27, 2):
        A("  v_max3_u32 v3, v3, v%d, v%d" % (q, q + 1))
    A("  v_max_u32 v3, v3, v27")
    A("  v_cmp_eq_u32 vcc, -1, v3")
    A("  s_cbranch_vccz L_hgot")
    if hsleep:
        A("  s_sleep %d" % hsleep)
    A("  s_sub_u32 s35, s35, 1")
    A("  s_cmp_eq_u32 s35, 0")
    A("  s_cbranch_scc0 L_hpoll")
    A("L_hgot:")
    ST(3)
    for c in range(4):
        A("  v_add_f32 v%d, v%d, v%d" % (12 + c, 12 + c, 16 + c))
        A("  v_add_f32 v%d, v%d, v%d" % (20 + c, 20 + c, 24 + c))
    for c in range(4):
        A("  v_add_f32 v%d, v%d, v%d" % (12 + c, 12 + c, 20 + c))
    A("  s_nop 1")
    A("  v_permlane32_swap_b32 v12, v14")
    A("  v_permlane32_swap_b32 v13, v15")
    A("  s_nop 1")
    A("  v_add_f32 v12, v12, v14")
    A("  v_add_f32 v13, v13, v15")
    A("  s_nop 1")
    A("  v_permlane16_swap_b32 v12, v13")
    A("  s_nop 1")
    A("  v_add_f32 v12, v12, v13")
    A("  s_nop 1")
    A("  v_add_f32_dpp v12, v12, v12 row_ror:8 row_mask:0xf bank_mask:0xf")
    A("  v_lshrrev_b32 v5, 6, v0")
    A("  v_lshlrev_b32 v5, 7, v5")
    A("  v_and_b32 v6, 7, v0")
    A("  v_lshl_add_u32 v5, v6, 4, v5")
    A("  v_bfe_u32 v6, v0, 4, 2")
    A("  v_lshl_add_u32 v5, v6, 2, v5")
    A("  ds_write_b32 v5, v12")
    A("  s_waitcnt lgkmcnt(0)")
    A("  s_barrier")
    A("  s_cmp_lg_u32 s3, 0")
    A("  s_cbranch_scc1 L_end")
    A("  s_mov_b32 exec_hi, 0")
    A("  v_lshlrev_b32 v6, 2, v0")
    A("  ds_read2_b32 v[8:9], v6 offset0:0 offset1:32")
    A("  ds_read2_b32 v[10:11], v6 offset0:64 offset1:96")
    A("  ds_read2_b32 v[12:13], v6 offset0:128 offset1:160")
    A("  ds_read_b32 v14, v6 offset:768")
    A("  s_lshl_b32 s33, s32, 6")
    A("  v_lshlrev_b32 v7, 1, v0")
    A("  v_add_u32 v7, s33, v7")
    A("  s_waitcnt lgkmcnt(0)")
    A("  v_add_f32 v8, v8, v9")
    A("  v_add_f32 v10, v10, v11")
    A("  v_add_f32 v12, v12, v13")
    A("  v_add_f32 v8, v8, v14")
    A("  v_add_f32 v10, v10, v12")
    A("  v_add_f32 v8, v8, v10")
    A("  v_cvt_pk_bf16_f32 v8, v8, v8")
    A("  buffer_store_short v8, v7, s[20:23], 0 offen")
    if stamps:
        ST(4)
        A("  s_waitcnt vmcnt(0)")
        ST(5)
        STOUT(3 if stamps == 2 else 0, 6, 9)
    A("  s_endpgm")
    A("L_h7:")
    A("  s_mul_i32 s33, s32, 3584")
    A("  s_add_u32 s33, s33, %d" % MB1)
    A("  v_add_u32 v1, s33, v2")
    A("  s_lshl_b32 s34, s32, 2")
    A("  s_add_u32 s34, s34, 128")
    A("  v_mov_b32 v3, s34")
    A("  v_mov_b32 v4, 1")
    A("  s_mov_b32 exec_hi, 0x00ffffff")
    A("  s_waitcnt lgkmcnt(0)")
    for i in range(4):
        A("  buffer_store_dwordx4 v[8:11], v1, s[28:31], 0 offen offset:%d sc1" % (i * 896))
    A("  s_waitcnt vmcnt(0)")
    A("  s_barrier")
    A("  s_mov_b64 exec, 1")
    A("  buffer_store_dword v4, v3, s[24:27], 0 offen sc1")
    if stamps:
        A("  s_waitcnt vmcnt(0)")
        ST(6)
        STOUT(6, 7, 9)
    A("L_end:")
    A("  s_endpgm")
    A('.section .rodata,"a"')
    A(".p2align 6")
    A(".amdhsa_kernel %s_kernel" % NAME)
    A("  .amdhsa_next_free_vgpr 100")
    A("  .amdhsa_next_free_sgpr 100")
    A("  .amdhsa_accum_offset 100")
    A("  .amdhsa_group_segment_fixed_size 0")
    A("  .amdhsa_kernarg_size 56")
    A("  .amdhsa_user_sgpr_count 2")
    A("  .amdhsa_user_sgpr_kernarg_segment_ptr 1")
    A("  .amdhsa_system_sgpr_workgroup_id_x 1")
    A("  .amdhsa_float_denorm_mode_32 3")
    A(".end_amdhsa_kernel")
    return "\n".join(o) + "\n"

if __name__ == "__main__":
    out = sys.argv[1]
    kw = {}
    for a in sys.argv[2:]:
        k, v = a.split("=")
        kw[k] = int(v) if v.isdigit() else v
    open(out, "w").write(gen(**kw))
```

```python
import sys
NAME = "standalone__glu_gated_bilinear__decode"
HDR = open('cdna_kernels/%s.s.ref' % NAME).read().split('; Override launch')[0]
MB2 = 0
MB1 = 64 * 7168
MBS = 56 * 8192
WSZ = MB1 + 2 * 56 * 8192
L_P = 0
L_A = 1024
L_H = 2048
L_N = 2304
L_C = 2312

def gen(stamps=0, pol="nt", hsleep=0, psleep=0, bar0=1, fastn=32, delta=3, so=0, nsleep=12, pre=0, asleep=4, fpol="nt"):
    o = []
    A = o.append
    pol = "" if pol == "x" else " " + pol.replace("_", " ")
    SB = 72
    def ST(k):
        if stamps:
            A("  s_memrealtime s[%d:%d]" % (SB + 2 * k, SB + 1 + 2 * k))
    def STOUT(ks):
        if not stamps:
            return
        A("  s_waitcnt lgkmcnt(0)")
        A("  s_mov_b32 s30, 0x10000000")
        A("  s_mov_b64 exec, 1")
        A("  s_add_u32 s33, s2, 224")
        A("  s_and_b32 s33, s33, 255")
        A("  s_lshl_b32 s33, s33, 7")
        A("  s_add_u32 s33, s33, 0x8000000")
        A("  v_mov_b32 v5, s33")
        for k in ks:
            A("  v_mov_b32 v6, s%d" % (SB + 2 * k))
            A("  v_mov_b32 v7, s%d" % (SB + 1 + 2 * k))
            A("  buffer_store_dwordx2 v[6:7], v5, s[28:31], 0 offen offset:%d" % (8 * k))
            A("  s_nop 1")
    def REDUCE8(a):
        for k in range(4):
            A("  v_permlane32_swap_b32 v%d, v%d" % (a + k, a + 4 + k))
        A("  s_nop 0")
        for k in range(4):
            A("  v_add_f32 v%d, v%d, v%d" % (a + k, a + k, a + 4 + k))
        A("  s_nop 0")
        for k in range(2):
            A("  v_permlane16_swap_b32 v%d, v%d" % (a + k, a + 2 + k))
        A("  s_nop 0")
        for k in range(2):
            A("  v_add_f32 v%d, v%d, v%d" % (a + k, a + k, a + 2 + k))
        A("  s_nop 0")
        for k in range(2):
            A("  v_add_f32_dpp v%d, v%d, v%d row_ror:8 row_mask:0xf bank_mask:0xf" % (12 + k, a + k, a + k))
    A(HDR.rstrip('\n'))
    A("; @launch grid=(256,1,1) block=(512,1,1) lds=4096")
    A('.amdgcn_target "amdgcn-amd-amdhsa--gfx950"')
    A(".text")
    A(".globl %s_kernel" % NAME)
    A(".p2align 8")
    A(".type %s_kernel,@function" % NAME)
    A("%s_kernel:" % NAME)
    ST(0)
    A("  s_load_dwordx2 s[4:5], s[0:1], 0")
    A("  s_load_dwordx2 s[8:9], s[0:1], 8")
    A("  s_load_dwordx2 s[12:13], s[0:1], 16")
    A("  s_load_dwordx2 s[16:17], s[0:1], 24")
    A("  s_load_dwordx2 s[20:21], s[0:1], 32")
    A("  s_load_dwordx2 s[24:25], s[0:1], 40")
    A("  s_load_dwordx2 s[28:29], s[0:1], 48")
    A("  v_readfirstlane_b32 s3, v0")
    A("  v_mov_b32 v11, 0")
    A("  v_mov_b32 v12, 0")
    A("  v_mov_b32 v13, 0")
    A("  v_mov_b32 v14, 0")
    A("  v_mov_b32 v15, 0")
    A("  ds_write_b128 v11, v[12:15] offset:%d" % L_N)
    A("  s_movk_i32 s6, 2048")
    A("  s_mov_b32 s7, 0x20000")
    A("  s_mov_b32 s10, 7340032")
    A("  s_mov_b32 s11, s7")
    A("  s_mov_b32 s18, s10")
    A("  s_mov_b32 s19, s7")
    A("  s_movk_i32 s22, 2048")
    A("  s_mov_b32 s23, s7")
    A("  s_movk_i32 s26, 256")
    A("  s_mov_b32 s27, s7")
    A("  s_mov_b32 s30, %d" % WSZ)
    A("  s_mov_b32 s31, s7")
    A("  s_lshr_b32 s3, s3, 6")
    A("  s_mov_b32 s35, 400000")
    A("  v_and_b32 v0, 63, v0")
    A("  s_cmp_lt_u32 s2, 32")
    A("  s_cbranch_scc1 L_helper")
    A("  s_cmp_ge_u32 s2, 256")
    A("  s_cbranch_scc1 L_end")
    A("  s_mov_b32 s38, 0x05040100")
    A("  s_mov_b32 s39, 0x07060302")
    A("  s_and_b32 s32, s2, 7")
    A("  s_mul_i32 s32, s32, 7")
    A("  s_lshr_b32 s33, s2, 5")
    A("  s_add_u32 s56, s33, %d" % (delta - 1))
    A("  s_sub_u32 s57, s56, 7")
    A("  s_cmp_ge_u32 s56, 7")
    A("  s_cselect_b32 s56, s57, s56")
    A("  s_add_u32 s56, s56, s32")
    A("  s_add_u32 s33, s33, s32")
    A("  s_sub_u32 s33, s33, 1")
    A("  s_lshr_b32 s34, s2, 3")
    A("  s_and_b32 s34, s34, 3")
    A("  v_lshrrev_b32 v2, 3, v0")
    A("  v_and_b32 v3, 7, v0")
    A("  s_cmp_ge_u32 s3, 4")
    A("  s_cbranch_scc1 L_ph2")
    A("  s_and_b32 s57, s3, 1")
    A("  s_lshl_b32 s36, s34, 1")
    A("  s_add_u32 s57, s57, s36")
    A("  s_cmp_ge_u32 s3, 2")
    A("  s_cselect_b32 s58, s56, s33")
    A("  s_mul_i32 s36, s57, %d" % (128 * 7168))
    A("  s_lshl_b32 s37, s58, 7")
    A("  s_add_u32 s36, s36, s37")
    A("  s_mov_b32 s37, %d" % (16 * 7168))
    A("  v_mul_lo_u32 v1, v2, s37")
    A("  v_lshl_add_u32 v1, v3, 4, v1")
    A("  v_add_u32 v1, s36, v1")
    A("  s_lshl_b32 s37, s57, 8")
    A("  v_lshl_add_u32 v4, v2, 5, s37")
    A("  s_movk_i32 s41, 7168")
    for i in range(2, 16):
        A("  s_add_u32 s%d, s%d, s41" % (40 + i, 39 + i))
    A("  v_lshrrev_b32 v6, 4, v0")
    A("  v_lshl_add_u32 v6, v3, 2, v6")
    A("  s_lshl_b32 s37, s58, 13")
    A("  s_lshl_b32 s59, s57, 10")
    A("  s_add_u32 s37, s37, s59")
    A("  s_and_b32 s59, s3, 2")
    A("  s_lshl_b32 s59, s59, 8")
    A("  s_add_u32 s37, s37, s59")
    A("  s_add_u32 s37, s37, %d" % MB1)
    A("  v_lshlrev_b32 v5, 4, v6")
    A("  v_add_u32 v5, s37, v5")
    A("  s_lshl_b32 s36, s33, 13")
    A("  s_add_u32 s36, s36, %d" % MB1)
    A("  s_lshl_b32 s37, s3, 11")
    A("  v_lshl_add_u32 v10, v0, 5, s37")
    A("  s_cmp_ge_u32 s3, 2")
    A("  s_waitcnt lgkmcnt(0)")
    A("  s_cselect_b32 s8, s12, s8")
    A("  s_cselect_b32 s9, s13, s9")
    if bar0 == 0:
        A("  s_barrier")
    ST(1)
    if pre == 1:
        A("  buffer_load_dword v13, v10, s[28:31], s36 offen sc1")
    if pre == 2:
        A("  buffer_store_dwordx4 v[12:15], v5, s[28:31], 0 offen")
    A("  buffer_load_dwordx4 v[24:27], v4, s[4:7], 0 offen")
    A("  buffer_load_dwordx4 v[28:31], v4, s[4:7], 0 offen offset:16")
    base = 32
    for i in range(16):
        reg = base + i * 4
        A("  buffer_load_dwordx4 v[%d:%d], v1, s[8:11], %s offen%s" % (reg, reg + 3, "0" if i == 0 else "s%d" % (40 + i), pol))
    if bar0 == 1:
        A("  s_barrier")
    for k in range(8):
        A("  v_mov_b32 v%d, 0" % (16 + k))
    A("  s_mov_b32 s64, %d" % MBS)
    A("  v_lshlrev_b32 v10, 4, v0")
    A("  v_add_u32 v10, s36, v10")
    A("  s_movk_i32 s40, 4096")
    A("  v_mov_b32 v2, 1")
    ST(2)
    if so == 1:
        A("  s_waitcnt vmcnt(0)")
        ST(3)
        A("  s_cmp_lg_u32 s3, 3")
        A("  s_cbranch_scc1 L_end")
        STOUT(range(0, 4))
        A("  s_endpgm")
    for k in range(8):
        A("  s_waitcnt vmcnt(%d)" % (14 - 2 * k))
        if bar0 >= 2 and k == bar0:
            A("  s_barrier")
        if k == 7:
            A("  ds_read_b64 v[14:15], v11 offset:%d" % L_N)
        r0 = base + 8 * k
        r1 = r0 + 4
        for c in range(4):
            A("  v_perm_b32 v6, v%d, v%d, s38" % (r1 + c, r0 + c))
            A("  v_perm_b32 v7, v%d, v%d, s39" % (r1 + c, r0 + c))
            A("  v_dot2c_f32_bf16 v%d, v%d, v6" % (16 + 2 * c, 24 + k))
            A("  v_dot2c_f32_bf16 v%d, v%d, v7" % (16 + 2 * c + 1, 24 + k))
    ST(3)
    A("  s_waitcnt lgkmcnt(0)")
    A("  v_min_u32 v6, v14, v15")
    A("  v_cmp_eq_u32 vcc, 0, v6")
    A("  s_cbranch_vccnz L_chk")
    A("L_chkok:")
    REDUCE8(16)
    A("  s_mov_b32 exec_lo, 0x00ff00ff")
    A("  s_mov_b32 exec_hi, 0x00ff00ff")
    A("  buffer_store_dwordx4 v[12:15], v5, s[28:31], 0 offen")
    ST(5)
    A("  s_mov_b64 exec, 1")
    A("  ds_add_rtn_u32 v2, v11, v2 offset:%d" % L_C)
    A("  s_mov_b64 exec, -1")
    A("  s_waitcnt lgkmcnt(0)")
    A("  v_readfirstlane_b32 s47, v2")
    A("  s_sub_u32 s46, s35, %d" % fastn)
    A("  v_lshlrev_b32 v9, 2, v0")
    A("  s_cmp_lg_u32 s47, 3")
    A("  s_cbranch_scc1 L_slowpub")
    if stamps:
        A("  s_waitcnt vmcnt(0)")
    ST(4)
    if so >= 2:
        STOUT(range(0, 6))
        A("  s_endpgm")
    def ld1(s, flav):
        A("  buffer_load_dwordx4 v[%d:%d], v10, s[28:31], %s offen offset:%d %s" % (32 + 4 * s, 35 + 4 * s, "0" if s < 4 else "s40", (s % 4) * 1024, flav))
    for s in range(8):
        ld1(s, fpol.replace("_", " "))
    A("L_poll1chk:")
    A("  s_waitcnt vmcnt(0)")
    for s in range(8):
        A("  v_cmp_ne_u64 s[%d:%d], v[%d:%d], v[14:15]" % (48 + 2 * s, 49 + 2 * s, 34 + 4 * s, 35 + 4 * s))
    for s in range(0, 8, 2):
        A("  v_add_f32 v%d, v%d, v%d" % (16 + s, 32 + 4 * s, 36 + 4 * s))
        A("  v_add_f32 v%d, v%d, v%d" % (17 + s, 33 + 4 * s, 37 + 4 * s))
    A("  s_or_b64 s[42:43], s[48:49], s[50:51]")
    A("  v_add_f32 v16, v16, v18")
    A("  s_or_b64 s[44:45], s[52:53], s[54:55]")
    A("  v_add_f32 v17, v17, v19")
    A("  s_or_b64 s[66:67], s[56:57], s[58:59]")
    A("  v_add_f32 v20, v20, v22")
    A("  s_or_b64 s[68:69], s[60:61], s[62:63]")
    A("  v_add_f32 v21, v21, v23")
    A("  s_or_b64 s[42:43], s[42:43], s[44:45]")
    A("  v_add_f32 v16, v16, v20")
    A("  s_or_b64 s[66:67], s[66:67], s[68:69]")
    A("  v_add_f32 v17, v17, v21")
    A("  v_cvt_pk_bf16_f32 v18, v16, v17")
    A("  v_mov_b32 v19, v18")
    A("  s_or_b64 s[42:43], s[42:43], s[66:67]")
    A("  s_cbranch_scc0 L_got1")
    A("  s_sub_u32 s35, s35, 1")
    A("  s_cmp_le_u32 s35, s46")
    A("  s_cbranch_scc1 L_slowpoll")
    for s in range(8):
        A("  s_mov_b64 exec, s[%d:%d]" % (48 + 2 * s, 49 + 2 * s))
        A("  s_cbranch_execz L_p1skip%d" % s)
        ld1(s, fpol.replace("_", " "))
        A("L_p1skip%d:" % s)
    A("  s_mov_b64 exec, -1")
    A("  s_branch L_poll1chk")
    A("L_slowpoll:")
    A("  s_cmp_lg_u32 s35, s46")
    A("  s_cbranch_scc1 L_noslow")
    A("  v_add_u32 v10, %d, v10" % MBS)
    A("  buffer_store_dwordx4 v[12:15], v5, s[28:31], s64 offen sc1")
    A("L_noslow:")
    for s in range(8):
        ld1(s, "sc1")
    A("  s_cmp_eq_u32 s35, 0")
    A("  s_cbranch_scc0 L_poll1chk")
    A("L_got1:")
    ST(6)
    if stamps:
        A("  s_sub_u32 s47, s46, s35")
        A("  s_add_u32 s47, s47, %d" % fastn)
        A("  s_add_u32 s74, s72, s47")
        A("  s_addc_u32 s75, s73, 0")
    A("  v_permlane32_swap_b32 v18, v19")
    A("  s_nop 1")
    A("  v_lshlrev_b32 v16, 16, v18")
    A("  v_and_b32 v17, 0xffff0000, v18")
    A("  v_lshlrev_b32 v20, 16, v19")
    A("  v_and_b32 v21, 0xffff0000, v19")
    A("  v_mul_f32 v16, v16, v20")
    A("  v_mul_f32 v17, v17, v21")
    A("  v_cvt_pk_bf16_f32 v16, v16, v17")
    A("  ds_write_b32 v9, v16 offset:%d" % L_H)
    A("  s_waitcnt lgkmcnt(0)")
    ST(7)
    A("  s_barrier")
    if stamps:
        A("  buffer_store_dwordx4 v[12:15], v5, s[28:31], s64 offen sc1")
        A("  s_nop 1")
        STOUT(range(0, 8))
        A("  s_endpgm")
    A("L_slowpub:")
    A("  buffer_store_dwordx4 v[12:15], v5, s[28:31], s64 offen sc1")
    A("  s_endpgm")
    A("L_chk:")
    A("  ds_read_b64 v[14:15], v11 offset:%d" % L_N)
    A("  s_sub_u32 s35, s35, 1")
    A("  s_cmp_eq_u32 s35, 0")
    A("  s_cbranch_scc1 L_chkok")
    A("  s_waitcnt lgkmcnt(0)")
    A("  v_min_u32 v6, v14, v15")
    A("  v_cmp_eq_u32 vcc, 0, v6")
    A("  s_cbranch_vccnz L_chk")
    A("  s_branch L_chkok")
    A("L_ph2:")
    A("  s_lshl_b32 s36, s33, 17")
    A("  s_lshl_b32 s37, s34, 9")
    A("  s_add_u32 s36, s36, s37")
    A("  s_and_b32 s57, s3, 3")
    A("  s_lshl_b32 s37, s57, 7")
    A("  s_add_u32 s36, s36, s37")
    A("  v_lshlrev_b32 v1, 14, v2")
    A("  v_lshl_add_u32 v1, v3, 4, v1")
    A("  v_add_u32 v1, s36, v1")
    for j in range(1, 4):
        A("  s_movk_i32 s%d, %d" % (48 + j, j * 4096))
    A("  s_waitcnt lgkmcnt(0)")
    A("  s_cmp_lg_u32 s3, %d" % (99 if so == 1 else 4))
    A("  s_cbranch_scc1 L_nononce")
    A("  s_sleep %d" % nsleep)
    A("  buffer_load_dwordx2 v[14:15], v11, s[24:27], 0 offen sc1")
    A("L_nononce:")
    A("  s_barrier")
    wbase = 32
    for j in range(8):
        reg = wbase + j * 4
        sof = "0" if j // 2 == 0 else "s%d" % (48 + j // 2)
        A("  buffer_load_dwordx4 v[%d:%d], v1, s[16:19], %s offen offset:%d%s" % (reg, reg + 3, sof, (j % 2) * 2048, pol))
    ST(8)
    A("  s_cmp_lg_u32 s3, %d" % (99 if so == 1 else 4))
    A("  s_cbranch_scc1 L_n2ok")
    A("  s_waitcnt vmcnt(8)")
    A("L_n2chk:")
    A("  v_min_u32 v10, v14, v15")
    A("  v_cmp_eq_u32 vcc, 0, v10")
    A("  s_cbranch_vccz L_n2wr")
    A("  s_sleep 1")
    A("  buffer_load_dwordx2 v[14:15], v11, s[24:27], 0 offen sc1")
    A("  s_sub_u32 s35, s35, 1")
    A("  s_waitcnt vmcnt(0)")
    A("  s_cmp_eq_u32 s35, 0")
    A("  s_cbranch_scc0 L_n2chk")
    A("L_n2wr:")
    A("  ds_write_b64 v11, v[14:15] offset:%d" % L_N)
    A("L_n2ok:")
    A("  v_lshlrev_b32 v6, 4, v2")
    A("  v_lshrrev_b32 v9, 1, v3")
    A("  s_movk_i32 s37, 7168")
    A("  v_mul_lo_u32 v9, v9, s37")
    A("  v_and_b32 v5, 1, v3")
    A("  v_lshl_add_u32 v9, v5, 6, v9")
    A("  v_lshrrev_b32 v5, 4, v0")
    A("  v_lshl_add_u32 v9, v5, 4, v9")
    A("  s_lshl_b32 s36, s34, 2")
    A("  s_add_u32 s36, s36, s57")
    A("  s_mul_i32 s36, s36, %d" % (4 * 7168))
    A("  s_lshl_b32 s37, s33, 7")
    A("  s_add_u32 s36, s36, s37")
    A("  v_add_u32 v9, s36, v9")
    for k in range(8):
        A("  v_mov_b32 v%d, 0" % (16 + k))
    pbase = 64
    for j in range(4):
        A("  s_waitcnt vmcnt(%d)" % (6 - 2 * j))
        r0 = wbase + 8 * j
        r1 = r0 + 4
        for c in range(4):
            A("  v_perm_b32 v%d, v%d, v%d, s38" % (pbase + 8 * j + 2 * c, r1 + c, r0 + c))
            A("  v_perm_b32 v%d, v%d, v%d, s39" % (pbase + 8 * j + 2 * c + 1, r1 + c, r0 + c))
    ST(9)
    if so:
        A("  s_cmp_lg_u32 s3, 7")
        A("  s_cbranch_scc1 L_end")
        STOUT(range(8, 10))
        A("  s_endpgm")
    if stamps:
        A("  s_waitcnt lgkmcnt(0)")
    A("  s_barrier")
    A("  ds_read_b128 v[24:27], v6 offset:%d" % L_H)
    A("  ds_read_b64 v[14:15], v11 offset:%d" % L_N)
    A("  s_waitcnt lgkmcnt(1)")
    for j in range(4):
        for c in range(8):
            A("  v_dot2c_f32_bf16 v%d, v%d, v%d" % (16 + c, 24 + j, pbase + 8 * j + c))
    A("  s_nop 0")
    REDUCE8(16)
    A("  s_mov_b32 exec_lo, 0x00ff00ff")
    A("  s_mov_b32 exec_hi, 0x00ff00ff")
    A("  s_waitcnt lgkmcnt(0)")
    A("  buffer_store_dwordx4 v[12:15], v9, s[28:31], 0 offen sc1")
    if stamps:
        ST(10)
        A("  s_waitcnt vmcnt(0)")
        ST(11)
        A("  s_cmp_lg_u32 s3, 7")
        A("  s_cbranch_scc1 L_end")
        STOUT(range(8, 12))
    A("  s_endpgm")
    A("L_helper:")
    if so == 1:
        A("  s_endpgm")
    A("  s_cmp_ge_u32 s3, 3")
    A("  s_cbranch_scc1 L_end")
    A("  s_cmp_lt_u32 s3, 2")
    A("  s_cbranch_scc1 L_hred")
    A("  s_cmp_ge_u32 s2, 8")
    A("  s_cbranch_scc1 L_end")
    A("  s_memrealtime s[44:45]")
    A("  v_mov_b32 v16, 0")
    A("  v_mov_b32 v17, 0")
    A("  s_mov_b64 exec, 1")
    A("  s_waitcnt lgkmcnt(0)")
    A("  s_or_b32 s44, s44, 1")
    A("  s_bitset1_b32 s45, 31")
    A("  v_mov_b32 v14, s44")
    A("  v_mov_b32 v15, s45")
    A("  buffer_atomic_cmpswap_x2 v[14:17], v11, s[24:27], 0 offen sc1")
    if stamps:
        A("  s_waitcnt vmcnt(0)")
        ST(6)
        STOUT([6])
    A("  s_endpgm")
    A("L_hred:")
    if so == 2 or so == 4:
        A("  s_endpgm")
    if so == 3:
        A("  s_mov_b32 s35, 30")
    A("  s_lshl_b32 s32, s2, 1")
    A("  s_add_u32 s32, s32, s3")
    A("  s_mul_i32 s33, s32, 7168")
    A("  v_lshlrev_b32 v1, 4, v0")
    A("  v_add_u32 v1, s33, v1")
    A("  s_movk_i32 s40, 4096")
    A("  v_and_b32 v3, 7, v0")
    A("  v_lshlrev_b32 v3, 2, v3")
    A("  v_lshrrev_b32 v4, 5, v0")
    A("  v_lshl_add_u32 v3, v4, 1, v3")
    A("  s_lshl_b32 s33, s32, 5")
    A("  v_add_u32 v3, s33, v3")
    A("  s_waitcnt lgkmcnt(0)")
    ST(1)
    A("L_hnonce:")
    A("  s_sleep 16")
    A("  buffer_load_dwordx2 v[14:15], v11, s[24:27], 0 offen sc1")
    A("  s_sub_u32 s35, s35, 1")
    A("  s_cmp_eq_u32 s35, 0")
    A("  s_cbranch_scc1 L_end")
    A("  s_waitcnt vmcnt(0)")
    A("  v_min_u32 v6, v14, v15")
    A("  v_cmp_eq_u32 vcc, 0, v6")
    A("  s_cbranch_vccnz L_hnonce")
    ST(2)
    A("  s_mov_b32 exec_lo, 0x01010101")
    A("  s_mov_b32 exec_hi, 0x01010101")
    A("L_hwait:")
    A("  buffer_load_dwordx4 v[16:19], v1, s[28:31], 0 offen sc1")
    A("  s_sub_u32 s35, s35, 1")
    A("  s_cmp_eq_u32 s35, 0")
    A("  s_cbranch_scc1 L_end")
    A("  s_waitcnt vmcnt(0)")
    A("  v_cmp_eq_u64 vcc, v[18:19], v[14:15]")
    A("  s_cbranch_vccnz L_hgo")
    A("  s_sleep %d" % asleep)
    A("  s_branch L_hwait")
    A("L_hgo:")
    A("  s_mov_b64 exec, -1")
    def ld2(i):
        A("  buffer_load_dwordx4 v[%d:%d], v1, s[28:31], %s offen offset:%d sc1" % (16 + 4 * i, 19 + 4 * i, "0" if i < 4 else "s40", (i % 4) * 1024))
    for i in range(7):
        ld2(i)
    A("L_hchk:")
    A("  s_waitcnt vmcnt(0)")
    for i in range(7):
        A("  v_cmp_ne_u64 s[%d:%d], v[%d:%d], v[14:15]" % (48 + 2 * i, 49 + 2 * i, 18 + 4 * i, 19 + 4 * i))
    A("  v_add_f32 v44, v16, v20")
    A("  v_add_f32 v45, v17, v21")
    A("  v_add_f32 v46, v24, v28")
    A("  v_add_f32 v47, v25, v29")
    A("  v_add_f32 v48, v32, v36")
    A("  v_add_f32 v49, v33, v37")
    A("  s_or_b64 s[42:43], s[48:49], s[50:51]")
    A("  v_add_f32 v44, v44, v40")
    A("  s_or_b64 s[44:45], s[52:53], s[54:55]")
    A("  v_add_f32 v45, v45, v41")
    A("  s_or_b64 s[46:47], s[56:57], s[58:59]")
    A("  v_add_f32 v46, v46, v48")
    A("  s_or_b64 s[42:43], s[42:43], s[60:61]")
    A("  v_add_f32 v47, v47, v49")
    A("  s_or_b64 s[44:45], s[44:45], s[46:47]")
    A("  v_add_f32 v44, v44, v46")
    A("  v_add_f32 v45, v45, v47")
    A("  s_or_b64 s[42:43], s[42:43], s[44:45]")
    A("  s_cbranch_scc0 L_hgot")
    if hsleep:
        A("  s_sleep %d" % hsleep)
    A("  s_sub_u32 s35, s35, 1")
    A("  s_cmp_eq_u32 s35, 0")
    A("  s_cbranch_scc1 L_hgot")
    for i in range(7):
        A("  s_mov_b64 exec, s[%d:%d]" % (48 + 2 * i, 49 + 2 * i))
        A("  s_cbranch_execz L_hskip%d" % i)
        ld2(i)
        A("L_hskip%d:" % i)
    A("  s_mov_b64 exec, -1")
    A("  s_branch L_hchk")
    A("L_hgot:")
    ST(3)
    A("  v_permlane32_swap_b32 v44, v45")
    A("  s_nop 1")
    A("  v_add_f32 v44, v44, v45")
    A("  s_nop 1")
    A("  v_add_f32_dpp v44, v44, v44 row_ror:8 row_mask:0xf bank_mask:0xf")
    A("  s_nop 1")
    A("  v_mov_b32 v45, v44")
    A("  s_nop 1")
    A("  v_permlane16_swap_b32 v44, v45")
    A("  s_nop 1")
    A("  v_add_f32 v44, v44, v45")
    A("  v_cvt_pk_bf16_f32 v44, v44, v44")
    A("  s_mov_b32 exec_lo, 0xff")
    A("  s_mov_b32 exec_hi, 0xff")
    A("  buffer_store_short v44, v3, s[20:23], 0 offen")
    if stamps:
        ST(4)
        A("  s_waitcnt vmcnt(0)")
        ST(5)
        A("  s_cmp_lg_u32 s3, 0")
        A("  s_cbranch_scc1 L_end")
        STOUT(range(0, 6))
    A("L_end:")
    A("  s_endpgm")
    A('.section .rodata,"a"')
    A(".p2align 6")
    A(".amdhsa_kernel %s_kernel" % NAME)
    A("  .amdhsa_next_free_vgpr 96")
    A("  .amdhsa_next_free_sgpr 100")
    A("  .amdhsa_accum_offset 96")
    A("  .amdhsa_group_segment_fixed_size 0")
    A("  .amdhsa_kernarg_size 56")
    A("  .amdhsa_user_sgpr_count 2")
    A("  .amdhsa_user_sgpr_kernarg_segment_ptr 1")
    A("  .amdhsa_system_sgpr_workgroup_id_x 1")
    A("  .amdhsa_float_denorm_mode_32 3")
    A(".end_amdhsa_kernel")
    return "\n".join(o) + "\n"

if __name__ == "__main__":
    out = sys.argv[1]
    kw = {}
    for a in sys.argv[2:]:
        k, v = a.split("=")
        kw[k] = int(v) if v.isdigit() else v
    open(out, "w").write(gen(**kw))
```

```python
import sys
NAME = "standalone__glu_gated_bilinear__decode"
HDR = open('cdna_kernels/%s.s.ref' % NAME).read().split('; Override launch')[0]
MB2 = 0
MB1 = 64 * 7168
MBS = 56 * 8192
WSZ = MB1 + 2 * 56 * 8192
L_P = 0
L_A = 1024
L_H = 2048
L_N = 2304
L_C = 2312

def gen(stamps=0, pol="nt", hsleep=0, psleep=0, bar0=1, fastn=32, delta=3, so=0, nsleep=12, pre=0, asleep=4, fpol="sc1", poller=0, hpol="sc1", nat=6, noslow=0, probe=0):
    o = []
    A = o.append
    pol = "" if pol == "x" else " " + pol.replace("_", " ")
    SB = 72
    def ST(k):
        if stamps:
            A("  s_memrealtime s[%d:%d]" % (SB + 2 * k, SB + 1 + 2 * k))
    def STOUT(ks):
        if not stamps:
            return
        A("  s_waitcnt lgkmcnt(0)")
        A("  s_mov_b32 s30, 0x10000000")
        A("  s_mov_b64 exec, 1")
        A("  s_add_u32 s33, s2, 224")
        A("  s_and_b32 s33, s33, 255")
        A("  s_lshl_b32 s33, s33, 7")
        A("  s_add_u32 s33, s33, 0x8000000")
        A("  v_mov_b32 v5, s33")
        for k in ks:
            A("  v_mov_b32 v6, s%d" % (SB + 2 * k))
            A("  v_mov_b32 v7, s%d" % (SB + 1 + 2 * k))
            A("  buffer_store_dwordx2 v[6:7], v5, s[28:31], 0 offen offset:%d" % (8 * k))
            A("  s_nop 1")
    def REDUCE8(a):
        for k in range(4):
            A("  v_permlane32_swap_b32 v%d, v%d" % (a + k, a + 4 + k))
        A("  s_nop 0")
        for k in range(4):
            A("  v_add_f32 v%d, v%d, v%d" % (a + k, a + k, a + 4 + k))
        A("  s_nop 0")
        for k in range(2):
            A("  v_permlane16_swap_b32 v%d, v%d" % (a + k, a + 2 + k))
        A("  s_nop 0")
        for k in range(2):
            A("  v_add_f32 v%d, v%d, v%d" % (a + k, a + k, a + 2 + k))
        A("  s_nop 0")
        for k in range(2):
            A("  v_add_f32_dpp v%d, v%d, v%d row_ror:8 row_mask:0xf bank_mask:0xf" % (12 + k, a + k, a + k))
    def NONCE_ISSUE():
        A("  s_load_dwordx2 s[70:71], s[24:25], s65")
    def NONCE_CHECK(tag):
        A("  s_min_u32 s37, s70, s71")
        A("  s_cmp_eq_u32 s37, 0")
        A("  s_cbranch_scc1 L_nslow%s" % tag)
        A("L_nok%s:" % tag)
        A("  v_mov_b32 v14, s70")
        A("  v_mov_b32 v15, s71")
    def NONCE_SLOW(tag):
        A("L_nslow%s:" % tag)
        A("  s_add_u32 s65, s65, 64")
        A("  s_cmp_ge_u32 s65, 256")
        A("  s_cbranch_scc1 L_nvec%s" % tag)
        A("  s_load_dwordx2 s[70:71], s[24:25], s65")
        A("  s_waitcnt lgkmcnt(0)")
        A("  s_min_u32 s37, s70, s71")
        A("  s_cmp_eq_u32 s37, 0")
        A("  s_cbranch_scc0 L_nok%s" % tag)
        A("  s_sleep 4")
        A("  s_branch L_nslow%s" % tag)
        A("L_nvec%s:" % tag)
        A("  s_and_b32 s37, s65, 63")
        A("  buffer_load_dwordx2 v[14:15], v11, s[24:27], s37 offen sc1")
        A("  s_sub_u32 s35, s35, 1")
        A("  s_waitcnt vmcnt(0)")
        A("  v_readfirstlane_b32 s70, v14")
        A("  v_readfirstlane_b32 s71, v15")
        A("  s_cmp_eq_u32 s35, 0")
        A("  s_cbranch_scc1 L_nok%s" % tag)
        A("  s_min_u32 s37, s70, s71")
        A("  s_cmp_eq_u32 s37, 0")
        A("  s_cbranch_scc1 L_nvec%s" % tag)
        A("  s_branch L_nok%s" % tag)
    A(HDR.rstrip('\n'))
    A("; @launch grid=(256,1,1) block=(512,1,1) lds=4096")
    A('.amdgcn_target "amdgcn-amd-amdhsa--gfx950"')
    A(".text")
    A(".globl %s_kernel" % NAME)
    A(".p2align 8")
    A(".type %s_kernel,@function" % NAME)
    A("%s_kernel:" % NAME)
    ST(0)
    A("  s_load_dwordx2 s[4:5], s[0:1], 0")
    A("  s_load_dwordx2 s[8:9], s[0:1], 8")
    A("  s_load_dwordx2 s[12:13], s[0:1], 16")
    A("  s_load_dwordx2 s[16:17], s[0:1], 24")
    A("  s_load_dwordx2 s[20:21], s[0:1], 32")
    A("  s_load_dwordx2 s[24:25], s[0:1], 40")
    A("  s_load_dwordx2 s[28:29], s[0:1], 48")
    A("  v_readfirstlane_b32 s3, v0")
    A("  v_mov_b32 v11, 0")
    A("  v_mov_b32 v12, 0")
    A("  v_mov_b32 v13, 0")
    A("  v_mov_b32 v14, 0")
    A("  v_mov_b32 v15, 0")
    A("  ds_write_b32 v11, v11 offset:%d" % L_C)
    A("  s_movk_i32 s6, 2048")
    A("  s_mov_b32 s7, 0x20000")
    A("  s_mov_b32 s10, 7340032")
    A("  s_mov_b32 s11, s7")
    A("  s_mov_b32 s18, s10")
    A("  s_mov_b32 s19, s7")
    A("  s_movk_i32 s22, 2048")
    A("  s_mov_b32 s23, s7")
    A("  s_movk_i32 s26, 256")
    A("  s_mov_b32 s27, s7")
    A("  s_mov_b32 s30, %d" % WSZ)
    A("  s_mov_b32 s31, s7")
    A("  s_lshr_b32 s3, s3, 6")
    A("  s_mov_b32 s35, 400000")
    A("  v_and_b32 v0, 63, v0")
    A("  s_cmp_lt_u32 s2, 32")
    A("  s_cbranch_scc1 L_helper")
    A("  s_cmp_ge_u32 s2, 256")
    A("  s_cbranch_scc1 L_end")
    A("  s_mov_b32 s38, 0x05040100")
    A("  s_mov_b32 s39, 0x07060302")
    A("  s_and_b32 s32, s2, 7")
    A("  s_lshl_b32 s65, s32, 3")
    A("  s_mul_i32 s32, s32, 7")
    A("  s_lshr_b32 s33, s2, 5")
    A("  s_add_u32 s56, s33, %d" % (delta - 1))
    A("  s_sub_u32 s57, s56, 7")
    A("  s_cmp_ge_u32 s56, 7")
    A("  s_cselect_b32 s56, s57, s56")
    A("  s_add_u32 s56, s56, s32")
    A("  s_add_u32 s33, s33, s32")
    A("  s_sub_u32 s33, s33, 1")
    A("  s_lshr_b32 s34, s2, 3")
    A("  s_and_b32 s34, s34, 3")
    A("  v_lshrrev_b32 v2, 3, v0")
    A("  v_and_b32 v3, 7, v0")
    A("  s_cmp_ge_u32 s3, 4")
    A("  s_cbranch_scc1 L_ph2")
    A("  s_and_b32 s57, s3, 1")
    A("  s_lshl_b32 s36, s34, 1")
    A("  s_add_u32 s57, s57, s36")
    A("  s_cmp_ge_u32 s3, 2")
    A("  s_cselect_b32 s58, s56, s33")
    A("  s_mul_i32 s36, s57, %d" % (128 * 7168))
    A("  s_lshl_b32 s37, s58, 7")
    A("  s_add_u32 s36, s36, s37")
    A("  s_mov_b32 s37, %d" % (16 * 7168))
    A("  v_mul_lo_u32 v1, v2, s37")
    A("  v_lshl_add_u32 v1, v3, 4, v1")
    A("  v_add_u32 v1, s36, v1")
    A("  s_lshl_b32 s37, s57, 8")
    A("  v_lshl_add_u32 v4, v2, 5, s37")
    A("  s_movk_i32 s41, 7168")
    for i in range(2, 16):
        A("  s_add_u32 s%d, s%d, s41" % (40 + i, 39 + i))
    A("  v_lshrrev_b32 v6, 4, v0")
    A("  v_lshl_add_u32 v6, v3, 2, v6")
    A("  s_lshl_b32 s37, s58, 13")
    A("  s_lshl_b32 s59, s57, 10")
    A("  s_add_u32 s37, s37, s59")
    A("  s_and_b32 s59, s3, 2")
    A("  s_lshl_b32 s59, s59, 8")
    A("  s_add_u32 s37, s37, s59")
    A("  s_add_u32 s37, s37, %d" % MB1)
    A("  v_lshlrev_b32 v5, 4, v6")
    A("  v_add_u32 v5, s37, v5")
    A("  s_lshl_b32 s36, s33, 13")
    A("  s_add_u32 s36, s36, %d" % MB1)
    A("  s_lshl_b32 s37, s3, 11")
    A("  v_lshl_add_u32 v10, v0, 5, s37")
    A("  s_cmp_ge_u32 s3, 2")
    A("  s_waitcnt lgkmcnt(0)")
    A("  s_cselect_b32 s8, s12, s8")
    A("  s_cselect_b32 s9, s13, s9")
    if bar0 == 0 or bar0 == 9:
        A("  s_barrier")
    ST(1)
    if pre == 1:
        A("  buffer_load_dword v13, v10, s[28:31], s36 offen sc1")
    if pre == 2:
        A("  buffer_store_dwordx4 v[12:15], v5, s[28:31], 0 offen")
    A("  buffer_load_dwordx4 v[24:27], v4, s[4:7], 0 offen")
    A("  buffer_load_dwordx4 v[28:31], v4, s[4:7], 0 offen offset:16")
    base = 32
    for i in range(16):
        reg = base + i * 4
        A("  buffer_load_dwordx4 v[%d:%d], v1, s[8:11], %s offen%s" % (reg, reg + 3, "0" if i == 0 else "s%d" % (40 + i), pol))
    if bar0 == 1:
        A("  s_barrier")
    for k in range(8):
        A("  v_mov_b32 v%d, 0" % (16 + k))
    A("  s_mov_b32 s64, %d" % MBS)
    A("  v_lshlrev_b32 v10, 4, v0")
    A("  v_add_u32 v10, s36, v10")
    A("  s_movk_i32 s40, 4096")
    A("  v_mov_b32 v2, 1")
    ST(2)
    if so == 1:
        A("  s_waitcnt vmcnt(0)")
        ST(3)
        A("  s_cmp_lg_u32 s3, 3")
        A("  s_cbranch_scc1 L_end")
        STOUT(range(0, 4))
        A("  s_endpgm")
    for k in range(8):
        A("  s_waitcnt vmcnt(%d)" % (14 - 2 * k))
        if bar0 >= 2 and bar0 < 9 and k == bar0:
            A("  s_barrier")
        if k == nat:
            NONCE_ISSUE()
        r0 = base + 8 * k
        r1 = r0 + 4
        for c in range(4):
            A("  v_perm_b32 v6, v%d, v%d, s38" % (r1 + c, r0 + c))
            A("  v_perm_b32 v7, v%d, v%d, s39" % (r1 + c, r0 + c))
            A("  v_dot2c_f32_bf16 v%d, v%d, v6" % (16 + 2 * c, 24 + k))
            A("  v_dot2c_f32_bf16 v%d, v%d, v7" % (16 + 2 * c + 1, 24 + k))
    ST(3)
    A("  s_waitcnt lgkmcnt(0)")
    NONCE_CHECK("a")
    REDUCE8(16)
    A("  s_mov_b32 exec_lo, 0x00ff00ff")
    A("  s_mov_b32 exec_hi, 0x00ff00ff")
    A("  buffer_store_dwordx4 v[12:15], v5, s[28:31], 0 offen")
    ST(5)
    A("  s_mov_b64 exec, 1")
    A("  ds_add_rtn_u32 v2, v11, v2 offset:%d" % L_C)
    A("  s_mov_b64 exec, -1")
    A("  s_waitcnt lgkmcnt(0)")
    A("  v_readfirstlane_b32 s47, v2")
    A("  s_sub_u32 s46, s35, %d" % fastn)
    A("  v_lshlrev_b32 v9, 2, v0")
    A("  s_cmp_lg_u32 s47, %d" % poller)
    A("  s_cbranch_scc1 L_slowpub")
    ST(4)
    if so >= 2:
        STOUT(range(0, 6))
        A("  s_endpgm")
    def ld1(s, flav):
        A("  buffer_load_dwordx4 v[%d:%d], v10, s[28:31], %s offen offset:%d %s" % (32 + 4 * s, 35 + 4 * s, "0" if s < 4 else "s40", (s % 4) * 1024, flav))
    for s in range(8):
        ld1(s, fpol.replace("_", " "))
    A("L_poll1chk:")
    A("  s_waitcnt vmcnt(0)")
    for s in range(8):
        A("  v_cmp_ne_u64 s[%d:%d], v[%d:%d], v[14:15]" % (48 + 2 * s, 49 + 2 * s, 34 + 4 * s, 35 + 4 * s))
    for s in range(0, 8, 2):
        A("  v_add_f32 v%d, v%d, v%d" % (16 + s, 32 + 4 * s, 36 + 4 * s))
        A("  v_add_f32 v%d, v%d, v%d" % (17 + s, 33 + 4 * s, 37 + 4 * s))
    A("  s_or_b64 s[42:43], s[48:49], s[50:51]")
    A("  v_add_f32 v16, v16, v18")
    A("  s_or_b64 s[44:45], s[52:53], s[54:55]")
    A("  v_add_f32 v17, v17, v19")
    A("  s_or_b64 s[66:67], s[56:57], s[58:59]")
    A("  v_add_f32 v20, v20, v22")
    A("  s_or_b64 s[68:69], s[60:61], s[62:63]")
    A("  v_add_f32 v21, v21, v23")
    A("  s_or_b64 s[42:43], s[42:43], s[44:45]")
    A("  v_add_f32 v16, v16, v20")
    A("  s_or_b64 s[66:67], s[66:67], s[68:69]")
    A("  v_add_f32 v17, v17, v21")
    A("  v_cvt_pk_bf16_f32 v18, v16, v17")
    A("  v_mov_b32 v19, v18")
    A("  s_or_b64 s[42:43], s[42:43], s[66:67]")
    A("  s_cbranch_scc0 L_got1")
    A("  s_sub_u32 s35, s35, 1")
    A("  s_cmp_le_u32 s35, s46")
    A("  s_cbranch_scc1 L_slowpoll")
    for s in range(8):
        A("  s_mov_b64 exec, s[%d:%d]" % (48 + 2 * s, 49 + 2 * s))
        A("  s_cbranch_execz L_p1skip%d" % s)
        ld1(s, fpol.replace("_", " "))
        A("L_p1skip%d:" % s)
    A("  s_mov_b64 exec, -1")
    A("  s_branch L_poll1chk")
    A("L_slowpoll:")
    A("  s_cmp_lg_u32 s35, s46")
    A("  s_cbranch_scc1 L_noslow")
    A("  v_add_u32 v10, %d, v10" % MBS)
    A("  buffer_store_dwordx4 v[12:15], v5, s[28:31], s64 offen sc1")
    A("L_noslow:")
    for s in range(8):
        ld1(s, "sc1")
    A("  s_cmp_eq_u32 s35, 0")
    A("  s_cbranch_scc0 L_poll1chk")
    A("L_got1:")
    ST(6)
    if stamps:
        A("  s_sub_u32 s47, s46, s35")
        A("  s_add_u32 s47, s47, %d" % fastn)
        A("  s_add_u32 s74, s72, s47")
        A("  s_addc_u32 s75, s73, 0")
    A("  v_permlane32_swap_b32 v18, v19")
    A("  s_nop 1")
    A("  v_lshlrev_b32 v16, 16, v18")
    A("  v_and_b32 v17, 0xffff0000, v18")
    A("  v_lshlrev_b32 v20, 16, v19")
    A("  v_and_b32 v21, 0xffff0000, v19")
    A("  v_mul_f32 v16, v16, v20")
    A("  v_mul_f32 v17, v17, v21")
    A("  v_cvt_pk_bf16_f32 v16, v16, v17")
    A("  ds_write_b32 v9, v16 offset:%d" % L_H)
    if bar0 == 9:
        A("  ds_write_b64 v11, v[14:15] offset:%d" % L_N)
    A("  s_waitcnt lgkmcnt(0)")
    ST(7)
    A("  s_barrier")
    if stamps:
        if not noslow:
            A("  buffer_store_dwordx4 v[12:15], v5, s[28:31], s64 offen sc1")
        A("  s_nop 1")
        STOUT(range(0, 8) if poller == 3 else [0, 1, 2, 4, 6, 7])
        A("  s_endpgm")
    A("L_slowpub:")
    if not noslow:
        A("  buffer_store_dwordx4 v[12:15], v5, s[28:31], s64 offen sc1")
    if stamps and poller != 3:
        A("  s_cmp_lg_u32 s47, 3")
        A("  s_cbranch_scc1 L_end")
        STOUT([3, 5])
    A("  s_endpgm")
    NONCE_SLOW("a")
    if bar0 != 9:
        NONCE_SLOW("b")
    A("L_ph2:")
    A("  s_lshl_b32 s36, s33, 17")
    A("  s_lshl_b32 s37, s34, 9")
    A("  s_add_u32 s36, s36, s37")
    A("  s_and_b32 s57, s3, 3")
    A("  s_lshl_b32 s37, s57, 7")
    A("  s_add_u32 s36, s36, s37")
    A("  v_lshlrev_b32 v1, 14, v2")
    A("  v_lshl_add_u32 v1, v3, 4, v1")
    A("  v_add_u32 v1, s36, v1")
    for j in range(1, 4):
        A("  s_movk_i32 s%d, %d" % (48 + j, j * 4096))
    A("  s_waitcnt lgkmcnt(0)")
    if bar0 != 9:
        A("  s_barrier")
    wbase = 32
    for j in range(8):
        reg = wbase + j * 4
        sof = "0" if j // 2 == 0 else "s%d" % (48 + j // 2)
        A("  buffer_load_dwordx4 v[%d:%d], v1, s[16:19], %s offen offset:%d%s" % (reg, reg + 3, sof, (j % 2) * 2048, pol))
    if bar0 == 9:
        A("  s_barrier")
    ST(8)
    A("  v_lshlrev_b32 v6, 4, v2")
    A("  v_lshrrev_b32 v9, 1, v3")
    A("  s_movk_i32 s37, 7168")
    A("  v_mul_lo_u32 v9, v9, s37")
    A("  v_and_b32 v5, 1, v3")
    A("  v_lshl_add_u32 v9, v5, 6, v9")
    A("  v_lshrrev_b32 v5, 4, v0")
    A("  v_lshl_add_u32 v9, v5, 4, v9")
    A("  s_lshl_b32 s36, s34, 2")
    A("  s_add_u32 s36, s36, s57")
    A("  s_mul_i32 s36, s36, %d" % (4 * 7168))
    A("  s_lshl_b32 s37, s33, 7")
    A("  s_add_u32 s36, s36, s37")
    A("  v_add_u32 v9, s36, v9")
    for k in range(8):
        A("  v_mov_b32 v%d, 0" % (16 + k))
    pbase = 64
    for j in range(4):
        A("  s_waitcnt vmcnt(%d)" % (6 - 2 * j))
        if j == 3 and bar0 != 9:
            NONCE_ISSUE()
        r0 = wbase + 8 * j
        r1 = r0 + 4
        for c in range(4):
            A("  v_perm_b32 v%d, v%d, v%d, s38" % (pbase + 8 * j + 2 * c, r1 + c, r0 + c))
            A("  v_perm_b32 v%d, v%d, v%d, s39" % (pbase + 8 * j + 2 * c + 1, r1 + c, r0 + c))
    ST(9)
    if so:
        A("  s_cmp_lg_u32 s3, 7")
        A("  s_cbranch_scc1 L_end")
        STOUT(range(8, 10))
        A("  s_endpgm")
    A("  s_waitcnt lgkmcnt(0)")
    if bar0 != 9:
        NONCE_CHECK("b")
    A("  s_barrier")
    A("  ds_read_b128 v[24:27], v6 offset:%d" % L_H)
    if bar0 == 9:
        A("  ds_read_b64 v[14:15], v11 offset:%d" % L_N)
    A("  s_waitcnt lgkmcnt(0)")
    for j in range(4):
        for c in range(8):
            A("  v_dot2c_f32_bf16 v%d, v%d, v%d" % (16 + c, 24 + j, pbase + 8 * j + c))
    A("  s_nop 0")
    REDUCE8(16)
    A("  s_mov_b32 exec_lo, 0x00ff00ff")
    A("  s_mov_b32 exec_hi, 0x00ff00ff")
    A("  buffer_store_dwordx4 v[12:15], v9, s[28:31], 0 offen sc1")
    if stamps:
        ST(10)
        A("  s_waitcnt vmcnt(0)")
        ST(11)
        A("  s_cmp_lg_u32 s3, 7")
        A("  s_cbranch_scc1 L_end")
        STOUT(range(8, 12))
    A("  s_endpgm")
    A("L_helper:")
    if so == 1:
        A("  s_endpgm")
    A("  s_cmp_ge_u32 s3, 3")
    A("  s_cbranch_scc1 L_end")
    A("  s_cmp_lt_u32 s3, 2")
    A("  s_cbranch_scc1 L_hred")
    A("  s_cmp_ge_u32 s2, 8")
    A("  s_cbranch_scc1 L_end")
    A("  s_memrealtime s[44:45]")
    A("  s_lshl_b32 s37, s2, 3")
    A("  v_lshl_add_u32 v16, v0, 6, s37")
    A("  s_mov_b64 exec, 15")
    A("  s_waitcnt lgkmcnt(0)")
    A("  s_or_b32 s44, s44, 1")
    A("  s_bitset1_b32 s45, 31")
    A("  v_mov_b32 v14, s44")
    A("  v_mov_b32 v15, s45")
    A("  buffer_store_dwordx2 v[14:15], v16, s[24:27], 0 offen sc1")
    if stamps:
        A("  s_waitcnt vmcnt(0)")
        ST(6)
        STOUT([6])
    A("  s_endpgm")
    A("L_hred:")
    if so == 2 or so == 4:
        A("  s_endpgm")
    if so == 3:
        A("  s_mov_b32 s35, 30")
    A("  s_lshl_b32 s32, s2, 1")
    A("  s_add_u32 s32, s32, s3")
    A("  s_mul_i32 s33, s32, 7168")
    A("  v_lshlrev_b32 v1, 4, v0")
    A("  v_add_u32 v1, s33, v1")
    A("  s_movk_i32 s40, 4096")
    A("  v_and_b32 v3, 7, v0")
    A("  v_lshlrev_b32 v3, 2, v3")
    A("  v_lshrrev_b32 v4, 5, v0")
    A("  v_lshl_add_u32 v3, v4, 1, v3")
    A("  s_lshl_b32 s33, s32, 5")
    A("  v_add_u32 v3, s33, v3")
    A("  s_waitcnt lgkmcnt(0)")
    ST(1)
    A("  v_lshrrev_b32 v4, 3, v0")
    for i in range(7):
        A("  v_add_u32 v5, %d, v4" % (8 * i))
        A("  v_mul_u32_u24 v5, 37, v5")
        A("  v_lshrrev_b32 v5, 8, v5")
        A("  v_lshlrev_b32 v%d, 3, v5" % (64 + i))
    A("L_hnonce:")
    A("  s_sleep 24")
    for i in range(7):
        A("  buffer_load_dwordx2 v[%d:%d], v%d, s[24:27], 0 offen sc1" % (50 + 2 * i, 51 + 2 * i, 64 + i))
    A("  s_sub_u32 s35, s35, 1")
    A("  s_cmp_eq_u32 s35, 0")
    A("  s_cbranch_scc1 L_end")
    A("  s_waitcnt vmcnt(0)")
    A("  v_min3_u32 v6, v50, v51, v52")
    for r in range(53, 63, 2):
        A("  v_min3_u32 v6, v6, v%d, v%d" % (r, r + 1))
    A("  v_min_u32 v6, v6, v63")
    A("  v_cmp_eq_u32 vcc, 0, v6")
    A("  s_cbranch_vccnz L_hnonce")
    ST(2)
    A("  s_mov_b32 exec_lo, 0x01010101")
    A("  s_mov_b32 exec_hi, 0x01010101")
    A("L_hwait:")
    A("  buffer_load_dwordx4 v[16:19], v1, s[28:31], 0 offen sc1")
    A("  s_sub_u32 s35, s35, 1")
    A("  s_cmp_eq_u32 s35, 0")
    A("  s_cbranch_scc1 L_end")
    A("  s_waitcnt vmcnt(0)")
    A("  v_cmp_eq_u64 vcc, v[18:19], v[50:51]")
    A("  s_cbranch_vccnz L_hgo")
    A("  s_sleep %d" % asleep)
    A("  s_branch L_hwait")
    A("L_hgo:")
    A("  s_mov_b64 exec, -1")
    def ld2(i):
        A("  buffer_load_dwordx4 v[%d:%d], v1, s[28:31], %s offen offset:%d %s" % (16 + 4 * i, 19 + 4 * i, "0" if i < 4 else "s40", (i % 4) * 1024, hpol.replace("_", " ")))
    for i in range(7):
        ld2(i)
    A("L_hchk:")
    A("  s_waitcnt vmcnt(0)")
    for i in range(7):
        A("  v_cmp_ne_u64 s[%d:%d], v[%d:%d], v[%d:%d]" % (48 + 2 * i, 49 + 2 * i, 18 + 4 * i, 19 + 4 * i, 50 + 2 * i, 51 + 2 * i))
    A("  v_add_f32 v44, v16, v20")
    A("  v_add_f32 v45, v17, v21")
    A("  v_add_f32 v46, v24, v28")
    A("  v_add_f32 v47, v25, v29")
    A("  v_add_f32 v48, v32, v36")
    A("  v_add_f32 v49, v33, v37")
    A("  s_or_b64 s[42:43], s[48:49], s[50:51]")
    A("  v_add_f32 v44, v44, v40")
    A("  s_or_b64 s[44:45], s[52:53], s[54:55]")
    A("  v_add_f32 v45, v45, v41")
    A("  s_or_b64 s[46:47], s[56:57], s[58:59]")
    A("  v_add_f32 v46, v46, v48")
    A("  s_or_b64 s[42:43], s[42:43], s[60:61]")
    A("  v_add_f32 v47, v47, v49")
    A("  s_or_b64 s[44:45], s[44:45], s[46:47]")
    A("  v_add_f32 v44, v44, v46")
    A("  v_add_f32 v45, v45, v47")
    A("  s_or_b64 s[42:43], s[42:43], s[44:45]")
    A("  s_cbranch_scc0 L_hgot")
    if hsleep:
        A("  s_sleep %d" % hsleep)
    A("  s_sub_u32 s35, s35, 1")
    A("  s_cmp_eq_u32 s35, 0")
    A("  s_cbranch_scc1 L_hgot")
    for i in range(7):
        A("  s_mov_b64 exec, s[%d:%d]" % (48 + 2 * i, 49 + 2 * i))
        A("  s_cbranch_execz L_hskip%d" % i)
        ld2(i)
        A("L_hskip%d:" % i)
    A("  s_mov_b64 exec, -1")
    A("  s_branch L_hchk")
    A("L_hgot:")
    ST(3)
    A("  v_permlane32_swap_b32 v44, v45")
    A("  s_nop 1")
    A("  v_add_f32 v44, v44, v45")
    A("  s_nop 1")
    A("  v_add_f32_dpp v44, v44, v44 row_ror:8 row_mask:0xf bank_mask:0xf")
    A("  s_nop 1")
    A("  v_mov_b32 v45, v44")
    A("  s_nop 1")
    A("  v_permlane16_swap_b32 v44, v45")
    A("  s_nop 1")
    A("  v_add_f32 v44, v44, v45")
    A("  v_cvt_pk_bf16_f32 v44, v44, v44")
    A("  s_mov_b32 exec_lo, 0xff")
    A("  s_mov_b32 exec_hi, 0xff")
    A("  buffer_store_short v44, v3, s[20:23], 0 offen")
    if probe:
        A("  s_memrealtime s[44:45]")
        A("  v_readfirstlane_b32 s46, v50")
        A("  s_waitcnt lgkmcnt(0)")
        A("  s_sub_u32 s47, s44, s46")
        A("  s_mul_i32 s47, s47, %d" % probe)
        A("  s_min_u32 s47, s47, 20000")
        A("L_probe:")
        A("  s_memrealtime s[42:43]")
        A("  s_waitcnt lgkmcnt(0)")
        A("  s_sub_u32 s42, s42, s44")
        A("  s_cmp_lt_u32 s42, s47")
        A("  s_cbranch_scc1 L_probe")
    if stamps:
        ST(4)
        A("  s_waitcnt vmcnt(0)")
        ST(5)
        A("  s_cmp_lg_u32 s3, 0")
        A("  s_cbranch_scc1 L_end")
        STOUT(range(0, 6))
    A("L_end:")
    A("  s_endpgm")
    A('.section .rodata,"a"')
    A(".p2align 6")
    A(".amdhsa_kernel %s_kernel" % NAME)
    A("  .amdhsa_next_free_vgpr 96")
    A("  .amdhsa_next_free_sgpr 100")
    A("  .amdhsa_accum_offset 96")
    A("  .amdhsa_group_segment_fixed_size 0")
    A("  .amdhsa_kernarg_size 56")
    A("  .amdhsa_user_sgpr_count 2")
    A("  .amdhsa_user_sgpr_kernarg_segment_ptr 1")
    A("  .amdhsa_system_sgpr_workgroup_id_x 1")
    A("  .amdhsa_float_denorm_mode_32 3")
    A(".end_amdhsa_kernel")
    return "\n".join(o) + "\n"

if __name__ == "__main__":
    out = sys.argv[1]
    kw = {}
    for a in sys.argv[2:]:
        k, v = a.split("=")
        kw[k] = int(v) if v.isdigit() else v
    open(out, "w").write(gen(**kw))
```

```python
import sys
NAME = "standalone__glu_gated_bilinear__decode"
HDR = open('cdna_kernels/%s.s.ref' % NAME).read().split('; Override launch')[0]
MB2 = 0
MB1 = 64 * 7168
MBS = 56 * 8192
WSZ = MB1 + 2 * 56 * 8192
L_P = 0
L_A = 1024
L_H = 2048
L_N = 2304
L_C = 2312

def gen(stamps=0, pol="nt", hsleep=0, psleep=0, bar0=1, fastn=32, delta=3, so=0, nsleep=12, pre=2, asleep=4, fpol="sc1", poller=0, hpol="sc1", nat=6, noslow=0, probe=0, trig=0, scr=0):
    o = []
    A = o.append
    pol = "" if pol == "x" else " " + pol.replace("_", " ")
    SB = 72
    def ST(k):
        if stamps:
            A("  s_memrealtime s[%d:%d]" % (SB + 2 * k, SB + 1 + 2 * k))
    def STOUT(ks):
        if not stamps:
            return
        A("  s_waitcnt lgkmcnt(0)")
        A("  s_mov_b32 s30, 0x10000000")
        A("  s_mov_b64 exec, 1")
        A("  s_add_u32 s33, s2, 224")
        A("  s_and_b32 s33, s33, 255")
        A("  s_lshl_b32 s33, s33, 7")
        A("  s_add_u32 s33, s33, 0x8000000")
        A("  v_mov_b32 v5, s33")
        for k in ks:
            A("  v_mov_b32 v6, s%d" % (SB + 2 * k))
            A("  v_mov_b32 v7, s%d" % (SB + 1 + 2 * k))
            A("  buffer_store_dwordx2 v[6:7], v5, s[28:31], 0 offen offset:%d" % (8 * k))
            A("  s_nop 1")
    def REDUCE8(a):
        for k in range(4):
            A("  v_permlane32_swap_b32 v%d, v%d" % (a + k, a + 4 + k))
        A("  s_nop 0")
        for k in range(4):
            A("  v_add_f32 v%d, v%d, v%d" % (a + k, a + k, a + 4 + k))
        A("  s_nop 0")
        for k in range(2):
            A("  v_permlane16_swap_b32 v%d, v%d" % (a + k, a + 2 + k))
        A("  s_nop 0")
        for k in range(2):
            A("  v_add_f32 v%d, v%d, v%d" % (a + k, a + k, a + 2 + k))
        A("  s_nop 0")
        for k in range(2):
            A("  v_add_f32_dpp v%d, v%d, v%d row_ror:8 row_mask:0xf bank_mask:0xf" % (12 + k, a + k, a + k))
    def NONCE_ISSUE():
        A("  s_load_dwordx2 s[70:71], s[24:25], s65")
    def NONCE_CHECK(tag):
        A("  s_min_u32 s37, s70, s71")
        A("  s_cmp_eq_u32 s37, 0")
        A("  s_cbranch_scc1 L_nslow%s" % tag)
        A("L_nok%s:" % tag)
        A("  v_mov_b32 v14, s70")
        A("  v_mov_b32 v15, s71")
    def NONCE_SLOW(tag):
        A("L_nslow%s:" % tag)
        A("  s_add_u32 s65, s65, 64")
        A("  s_cmp_ge_u32 s65, 256")
        A("  s_cbranch_scc1 L_nvec%s" % tag)
        A("  s_load_dwordx2 s[70:71], s[24:25], s65")
        A("  s_waitcnt lgkmcnt(0)")
        A("  s_min_u32 s37, s70, s71")
        A("  s_cmp_eq_u32 s37, 0")
        A("  s_cbranch_scc0 L_nok%s" % tag)
        A("  s_sleep 4")
        A("  s_branch L_nslow%s" % tag)
        A("L_nvec%s:" % tag)
        A("  s_and_b32 s37, s65, 63")
        A("  buffer_load_dwordx2 v[14:15], v11, s[24:27], s37 offen sc1")
        A("  s_sub_u32 s35, s35, 1")
        A("  s_waitcnt vmcnt(0)")
        A("  v_readfirstlane_b32 s70, v14")
        A("  v_readfirstlane_b32 s71, v15")
        A("  s_cmp_eq_u32 s35, 0")
        A("  s_cbranch_scc1 L_nok%s" % tag)
        A("  s_min_u32 s37, s70, s71")
        A("  s_cmp_eq_u32 s37, 0")
        A("  s_cbranch_scc1 L_nvec%s" % tag)
        A("  s_branch L_nok%s" % tag)
    A(HDR.rstrip('\n'))
    A("; @launch grid=(256,1,1) block=(512,1,1) lds=4096")
    A('.amdgcn_target "amdgcn-amd-amdhsa--gfx950"')
    A(".text")
    A(".globl %s_kernel" % NAME)
    A(".p2align 8")
    A(".type %s_kernel,@function" % NAME)
    A("%s_kernel:" % NAME)
    ST(0)
    A("  s_load_dwordx2 s[4:5], s[0:1], 0")
    A("  s_load_dwordx2 s[8:9], s[0:1], 8")
    A("  s_load_dwordx2 s[12:13], s[0:1], 16")
    A("  s_load_dwordx2 s[16:17], s[0:1], 24")
    A("  s_load_dwordx2 s[20:21], s[0:1], 32")
    A("  s_load_dwordx2 s[24:25], s[0:1], 40")
    A("  s_load_dwordx2 s[28:29], s[0:1], 48")
    A("  v_readfirstlane_b32 s3, v0")
    A("  v_mov_b32 v11, 0")
    A("  v_mov_b32 v12, 0")
    A("  v_mov_b32 v13, 0")
    A("  v_mov_b32 v14, 0")
    A("  v_mov_b32 v15, 0")
    A("  ds_write_b32 v11, v11 offset:%d" % L_C)
    A("  s_movk_i32 s6, 2048")
    A("  s_mov_b32 s7, 0x20000")
    A("  s_mov_b32 s10, 7340032")
    A("  s_mov_b32 s11, s7")
    A("  s_mov_b32 s18, s10")
    A("  s_mov_b32 s19, s7")
    A("  s_movk_i32 s22, 2048")
    A("  s_mov_b32 s23, s7")
    A("  s_movk_i32 s26, 256")
    A("  s_mov_b32 s27, s7")
    A("  s_mov_b32 s30, %d" % WSZ)
    A("  s_mov_b32 s31, s7")
    A("  s_lshr_b32 s3, s3, 6")
    A("  s_mov_b32 s35, 400000")
    A("  v_and_b32 v0, 63, v0")
    if scr:
        A("  s_lshr_b32 s33, s2, 3")
        A("  s_and_b32 s33, s33, 7")
        A("  s_xor_b32 s2, s2, s33")
    A("  s_cmp_lt_u32 s2, 32")
    A("  s_cbranch_scc1 L_helper")
    A("  s_cmp_ge_u32 s2, 256")
    A("  s_cbranch_scc1 L_end")
    A("  s_mov_b32 s38, 0x05040100")
    A("  s_mov_b32 s39, 0x07060302")
    A("  s_and_b32 s32, s2, 7")
    A("  s_lshl_b32 s65, s32, 3")
    A("  s_lshr_b32 s33, s2, 5")
    A("  s_sub_u32 s33, s33, 1")
    A("  s_xor_b32 s56, s33, 1")
    A("  s_cmp_eq_u32 s33, 6")
    A("  s_cselect_b32 s56, s33, s56")
    A("  s_cmp_eq_u32 s32, 3")
    A("  s_cselect_b32 s57, 1, 0")
    A("  s_add_u32 s33, s33, s57")
    A("  s_add_u32 s56, s56, s57")
    A("  s_cmp_eq_u32 s33, 7")
    A("  s_cselect_b32 s33, 0, s33")
    A("  s_cmp_eq_u32 s56, 7")
    A("  s_cselect_b32 s56, 0, s56")
    A("  s_mul_i32 s32, s32, 7")
    A("  s_add_u32 s33, s33, s32")
    A("  s_add_u32 s56, s56, s32")
    A("  s_lshr_b32 s34, s2, 3")
    A("  s_and_b32 s34, s34, 3")
    A("  v_lshrrev_b32 v2, 3, v0")
    A("  v_and_b32 v3, 7, v0")
    A("  s_cmp_ge_u32 s3, 4")
    A("  s_cbranch_scc1 L_ph2")
    A("  s_and_b32 s57, s3, 1")
    A("  s_lshl_b32 s36, s34, 1")
    A("  s_add_u32 s57, s57, s36")
    A("  s_cmp_ge_u32 s3, 2")
    A("  s_cselect_b32 s58, s56, s33")
    A("  s_mul_i32 s36, s57, %d" % (128 * 7168))
    A("  s_lshl_b32 s37, s58, 7")
    A("  s_add_u32 s36, s36, s37")
    A("  s_mov_b32 s37, %d" % (16 * 7168))
    A("  v_mul_lo_u32 v1, v2, s37")
    A("  v_lshl_add_u32 v1, v3, 4, v1")
    A("  v_add_u32 v1, s36, v1")
    A("  s_lshl_b32 s37, s57, 8")
    A("  v_lshl_add_u32 v4, v2, 5, s37")
    A("  s_movk_i32 s41, 7168")
    for i in range(2, 16):
        A("  s_add_u32 s%d, s%d, s41" % (40 + i, 39 + i))
    A("  v_lshrrev_b32 v6, 4, v0")
    A("  v_lshl_add_u32 v6, v3, 2, v6")
    A("  s_lshl_b32 s37, s58, 13")
    A("  s_lshl_b32 s59, s57, 10")
    A("  s_add_u32 s37, s37, s59")
    A("  s_and_b32 s59, s3, 2")
    A("  s_lshl_b32 s59, s59, 8")
    A("  s_add_u32 s37, s37, s59")
    A("  s_add_u32 s37, s37, %d" % MB1)
    A("  v_lshlrev_b32 v5, 4, v6")
    A("  v_add_u32 v5, s37, v5")
    A("  s_lshl_b32 s36, s33, 13")
    A("  s_add_u32 s36, s36, %d" % MB1)
    A("  s_lshl_b32 s37, s3, 11")
    A("  v_lshl_add_u32 v10, v0, 5, s37")
    A("  s_cmp_ge_u32 s3, 2")
    A("  s_waitcnt lgkmcnt(0)")
    A("  s_cselect_b32 s8, s12, s8")
    A("  s_cselect_b32 s9, s13, s9")
    if bar0 == 0 or bar0 == 9:
        A("  s_barrier")
    ST(1)
    if pre == 1:
        A("  buffer_load_dword v13, v10, s[28:31], s36 offen sc1")
    if pre == 2:
        A("  buffer_store_dwordx4 v[12:15], v5, s[28:31], 0 offen")
    A("  buffer_load_dwordx4 v[24:27], v4, s[4:7], 0 offen")
    A("  buffer_load_dwordx4 v[28:31], v4, s[4:7], 0 offen offset:16")
    base = 32
    for i in range(16):
        reg = base + i * 4
        A("  buffer_load_dwordx4 v[%d:%d], v1, s[8:11], %s offen%s" % (reg, reg + 3, "0" if i == 0 else "s%d" % (40 + i), pol))
    if bar0 == 1:
        A("  s_barrier")
    for k in range(8):
        A("  v_mov_b32 v%d, 0" % (16 + k))
    A("  s_mov_b32 s64, %d" % MBS)
    A("  s_getreg_b32 s41, hwreg(HW_REG_XCC_ID)")
    A("  s_and_b32 s41, s41, 15")
    A("  s_lshl_b32 s41, s41, 27")
    A("  s_lshl_b32 s37, s3, 7")
    A("  v_lshl_add_u32 v9, v6, 2, s37")
    A("  v_lshlrev_b32 v8, 1, v9")
    A("  v_lshlrev_b32 v10, 4, v0")
    A("  v_add_u32 v10, s36, v10")
    A("  s_movk_i32 s40, 4096")
    A("  v_mov_b32 v2, 1")
    ST(2)
    if so == 1:
        A("  s_waitcnt vmcnt(0)")
        ST(3)
        A("  s_cmp_lg_u32 s3, 3")
        A("  s_cbranch_scc1 L_end")
        STOUT(range(0, 4))
        A("  s_endpgm")
    for k in range(8):
        A("  s_waitcnt vmcnt(%d)" % (14 - 2 * k))
        if bar0 >= 2 and bar0 < 9 and k == bar0:
            A("  s_barrier")
        if k == nat:
            NONCE_ISSUE()
        r0 = base + 8 * k
        r1 = r0 + 4
        for c in range(4):
            A("  v_perm_b32 v6, v%d, v%d, s38" % (r1 + c, r0 + c))
            A("  v_perm_b32 v7, v%d, v%d, s39" % (r1 + c, r0 + c))
            A("  v_dot2c_f32_bf16 v%d, v%d, v6" % (16 + 2 * c, 24 + k))
            A("  v_dot2c_f32_bf16 v%d, v%d, v7" % (16 + 2 * c + 1, 24 + k))
    ST(3)
    A("  s_waitcnt lgkmcnt(0)")
    NONCE_CHECK("a")
    A("  v_or_b32 v15, s41, v15")
    REDUCE8(16)
    A("  s_mov_b32 exec_lo, 0x00ff00ff")
    A("  s_mov_b32 exec_hi, 0x00ff00ff")
    A("  buffer_store_dwordx4 v[12:15], v5, s[28:31], 0 offen")
    ST(5)
    A("  ds_write_b64 v8, v[12:13] offset:%d" % L_P)
    A("  ds_write_b32 v9, v5 offset:%d" % L_A)
    A("  s_mov_b64 exec, 1")
    A("  ds_add_rtn_u32 v2, v11, v2 offset:%d" % L_C)
    A("  s_mov_b64 exec, -1")
    A("  s_waitcnt lgkmcnt(0)")
    A("  v_readfirstlane_b32 s47, v2")
    A("  s_sub_u32 s46, s35, %d" % fastn)
    A("  v_lshlrev_b32 v9, 2, v0")
    A("  s_cmp_lg_u32 s47, 3")
    A("  s_cbranch_scc1 L_end")
    ST(4)
    if so >= 2:
        STOUT(range(0, 6))
        A("  s_endpgm")
    def ld1(s, flav):
        A("  buffer_load_dwordx4 v[%d:%d], v10, s[28:31], %s offen offset:%d %s" % (32 + 4 * s, 35 + 4 * s, "0" if s < 4 else "s40", (s % 4) * 1024, flav))
    for s in range(8):
        ld1(s, fpol.replace("_", " "))
    A("L_poll1chk:")
    A("  s_waitcnt vmcnt(0)")
    for s in range(8):
        A("  v_cmp_ne_u64 s[%d:%d], v[%d:%d], v[14:15]" % (48 + 2 * s, 49 + 2 * s, 34 + 4 * s, 35 + 4 * s))
    for s in range(0, 8, 2):
        A("  v_add_f32 v%d, v%d, v%d" % (16 + s, 32 + 4 * s, 36 + 4 * s))
        A("  v_add_f32 v%d, v%d, v%d" % (17 + s, 33 + 4 * s, 37 + 4 * s))
    A("  s_or_b64 s[42:43], s[48:49], s[50:51]")
    A("  v_add_f32 v16, v16, v18")
    A("  s_or_b64 s[44:45], s[52:53], s[54:55]")
    A("  v_add_f32 v17, v17, v19")
    A("  s_or_b64 s[66:67], s[56:57], s[58:59]")
    A("  v_add_f32 v20, v20, v22")
    A("  s_or_b64 s[68:69], s[60:61], s[62:63]")
    A("  v_add_f32 v21, v21, v23")
    A("  s_or_b64 s[42:43], s[42:43], s[44:45]")
    A("  v_add_f32 v16, v16, v20")
    A("  s_or_b64 s[66:67], s[66:67], s[68:69]")
    A("  v_add_f32 v17, v17, v21")
    A("  v_cvt_pk_bf16_f32 v18, v16, v17")
    A("  v_mov_b32 v19, v18")
    A("  s_or_b64 s[42:43], s[42:43], s[66:67]")
    A("  s_cbranch_scc0 L_got1")
    A("  s_sub_u32 s35, s35, 1")
    A("  s_cmp_le_u32 s35, s46")
    A("  s_cbranch_scc1 L_slowpoll")
    A("L_fastround:")
    for s in range(8):
        A("  s_mov_b64 exec, s[%d:%d]" % (48 + 2 * s, 49 + 2 * s))
        A("  s_cbranch_execz L_p1skip%d" % s)
        ld1(s, fpol.replace("_", " "))
        A("L_p1skip%d:" % s)
    A("  s_mov_b64 exec, -1")
    A("  s_branch L_poll1chk")
    A("L_slowpoll:")
    A("  s_cmp_eq_u32 s35, 0")
    A("  s_cbranch_scc1 L_got1")
    A("  s_cmp_lg_u32 s35, s46")
    A("  s_cbranch_scc1 L_noslow")
    A("  v_lshlrev_b32 v8, 3, v0")
    A("  ds_read_b64 v[20:21], v8 offset:%d" % L_P)
    A("  ds_read_b64 v[24:25], v8 offset:%d" % (L_P + 512))
    A("  ds_read_b32 v5, v9 offset:%d" % L_A)
    A("  ds_read_b32 v6, v9 offset:%d" % (L_A + 256))
    A("  v_mov_b32 v22, s70")
    A("  v_mov_b32 v23, s71")
    A("  v_mov_b32 v26, s70")
    A("  v_mov_b32 v27, s71")
    A("  v_add_u32 v4, %d, v10" % MBS)
    A("  s_waitcnt lgkmcnt(0)")
    A("  buffer_store_dwordx4 v[20:23], v5, s[28:31], s64 offen sc1")
    A("  buffer_store_dwordx4 v[24:27], v6, s[28:31], s64 offen sc1")
    A("L_noslow:")
    A("  s_bitcmp1_b32 s35, 0")
    A("  s_cbranch_scc1 L_fastround")
    for s in range(8):
        A("  s_mov_b64 exec, s[%d:%d]" % (48 + 2 * s, 49 + 2 * s))
        A("  s_cbranch_execz L_p1sk%d" % s)
        A("  buffer_load_dwordx4 v[%d:%d], v4, s[28:31], %s offen offset:%d sc1" % (32 + 4 * s, 35 + 4 * s, "0" if s < 4 else "s40", (s % 4) * 1024))
        A("  s_waitcnt vmcnt(0)")
        A("  v_xor_b32 v%d, s41, v%d" % (35 + 4 * s, 35 + 4 * s))
        A("L_p1sk%d:" % s)
    A("  s_mov_b64 exec, -1")
    A("  s_branch L_poll1chk")
    A("L_got1:")
    ST(6)
    if stamps:
        A("  s_sub_u32 s47, s46, s35")
        A("  s_add_u32 s47, s47, %d" % fastn)
        A("  s_add_u32 s74, s72, s47")
        A("  s_addc_u32 s75, s73, 0")
    A("  v_permlane32_swap_b32 v18, v19")
    A("  s_nop 1")
    A("  v_lshlrev_b32 v16, 16, v18")
    A("  v_and_b32 v17, 0xffff0000, v18")
    A("  v_lshlrev_b32 v20, 16, v19")
    A("  v_and_b32 v21, 0xffff0000, v19")
    A("  v_mul_f32 v16, v16, v20")
    A("  v_mul_f32 v17, v17, v21")
    A("  v_cvt_pk_bf16_f32 v16, v16, v17")
    A("  ds_write_b32 v9, v16 offset:%d" % L_H)
    if bar0 == 9:
        A("  ds_write_b64 v11, v[14:15] offset:%d" % L_N)
    A("  s_waitcnt lgkmcnt(0)")
    ST(7)
    A("  s_barrier")
    STOUT(range(0, 8))
    A("  s_endpgm")
    NONCE_SLOW("a")
    if bar0 != 9:
        NONCE_SLOW("b")
    A("L_ph2:")
    A("  s_lshl_b32 s36, s33, 17")
    A("  s_lshl_b32 s37, s34, 9")
    A("  s_add_u32 s36, s36, s37")
    A("  s_and_b32 s57, s3, 3")
    A("  s_lshl_b32 s37, s57, 7")
    A("  s_add_u32 s36, s36, s37")
    A("  v_lshlrev_b32 v1, 14, v2")
    A("  v_lshl_add_u32 v1, v3, 4, v1")
    A("  v_add_u32 v1, s36, v1")
    for j in range(1, 4):
        A("  s_movk_i32 s%d, %d" % (48 + j, j * 4096))
    A("  s_waitcnt lgkmcnt(0)")
    if bar0 != 9:
        A("  s_barrier")
    wbase = 32
    for j in range(8):
        reg = wbase + j * 4
        sof = "0" if j // 2 == 0 else "s%d" % (48 + j // 2)
        A("  buffer_load_dwordx4 v[%d:%d], v1, s[16:19], %s offen offset:%d%s" % (reg, reg + 3, sof, (j % 2) * 2048, pol))
    if bar0 == 9:
        A("  s_barrier")
    ST(8)
    A("  v_lshlrev_b32 v6, 4, v2")
    A("  v_lshrrev_b32 v9, 1, v3")
    A("  s_movk_i32 s37, 7168")
    A("  v_mul_lo_u32 v9, v9, s37")
    A("  v_and_b32 v5, 1, v3")
    A("  v_lshl_add_u32 v9, v5, 6, v9")
    A("  v_lshrrev_b32 v5, 4, v0")
    A("  v_lshl_add_u32 v9, v5, 4, v9")
    A("  s_lshl_b32 s36, s34, 2")
    A("  s_add_u32 s36, s36, s57")
    A("  s_mul_i32 s36, s36, %d" % (4 * 7168))
    A("  s_lshl_b32 s37, s33, 7")
    A("  s_add_u32 s36, s36, s37")
    A("  v_add_u32 v9, s36, v9")
    for k in range(8):
        A("  v_mov_b32 v%d, 0" % (16 + k))
    pbase = 64
    for j in range(4):
        A("  s_waitcnt vmcnt(%d)" % (6 - 2 * j))
        if j == 3 and bar0 != 9:
            NONCE_ISSUE()
        r0 = wbase + 8 * j
        r1 = r0 + 4
        for c in range(4):
            A("  v_perm_b32 v%d, v%d, v%d, s38" % (pbase + 8 * j + 2 * c, r1 + c, r0 + c))
            A("  v_perm_b32 v%d, v%d, v%d, s39" % (pbase + 8 * j + 2 * c + 1, r1 + c, r0 + c))
    ST(9)
    if so:
        A("  s_cmp_lg_u32 s3, 7")
        A("  s_cbranch_scc1 L_end")
        STOUT(range(8, 10))
        A("  s_endpgm")
    A("  s_waitcnt lgkmcnt(0)")
    if bar0 != 9:
        NONCE_CHECK("b")
    A("  s_barrier")
    A("  ds_read_b128 v[24:27], v6 offset:%d" % L_H)
    if bar0 == 9:
        A("  ds_read_b64 v[14:15], v11 offset:%d" % L_N)
    A("  s_waitcnt lgkmcnt(0)")
    for j in range(4):
        for c in range(8):
            A("  v_dot2c_f32_bf16 v%d, v%d, v%d" % (16 + c, 24 + j, pbase + 8 * j + c))
    A("  s_nop 0")
    REDUCE8(16)
    A("  s_mov_b32 exec_lo, 0x00ff00ff")
    A("  s_mov_b32 exec_hi, 0x00ff00ff")
    A("  buffer_store_dwordx4 v[12:15], v9, s[28:31], 0 offen sc1")
    if stamps:
        ST(10)
        A("  s_waitcnt vmcnt(0)")
        ST(11)
        A("  s_cmp_lg_u32 s3, 7")
        A("  s_cbranch_scc1 L_end")
        STOUT(range(8, 12))
    A("  s_endpgm")
    A("L_helper:")
    if so == 1:
        A("  s_endpgm")
    A("  s_cmp_ge_u32 s3, 3")
    A("  s_cbranch_scc1 L_end")
    A("  s_cmp_lt_u32 s3, 2")
    A("  s_cbranch_scc1 L_hred")
    A("  s_cmp_ge_u32 s2, 8")
    A("  s_cbranch_scc1 L_end")
    A("  s_memrealtime s[44:45]")
    A("  s_lshl_b32 s37, s2, 3")
    A("  v_lshl_add_u32 v16, v0, 6, s37")
    A("  s_mov_b64 exec, 15")
    A("  s_waitcnt lgkmcnt(0)")
    A("  s_or_b32 s44, s44, 1")
    A("  s_and_b32 s45, s45, 0x07ffffff")
    A("  s_bitset1_b32 s45, 31")
    A("  v_mov_b32 v14, s44")
    A("  v_mov_b32 v15, s45")
    A("  buffer_store_dwordx2 v[14:15], v16, s[24:27], 0 offen sc1")
    if stamps:
        A("  s_waitcnt vmcnt(0)")
        ST(6)
        STOUT([6])
    A("  s_endpgm")
    A("L_hred:")
    if so == 2 or so == 4:
        A("  s_endpgm")
    if so == 3:
        A("  s_mov_b32 s35, 30")
    A("  s_lshl_b32 s32, s2, 1")
    A("  s_add_u32 s32, s32, s3")
    A("  s_mul_i32 s33, s32, 7168")
    A("  v_lshlrev_b32 v1, 4, v0")
    A("  v_add_u32 v1, s33, v1")
    A("  s_movk_i32 s40, 4096")
    A("  v_and_b32 v3, 7, v0")
    A("  v_lshlrev_b32 v3, 2, v3")
    A("  v_lshrrev_b32 v4, 5, v0")
    A("  v_lshl_add_u32 v3, v4, 1, v3")
    A("  s_lshl_b32 s33, s32, 5")
    A("  v_add_u32 v3, s33, v3")
    A("  s_waitcnt lgkmcnt(0)")
    ST(1)
    A("  v_lshrrev_b32 v4, 3, v0")
    for i in range(7):
        A("  v_add_u32 v5, %d, v4" % (8 * i))
        A("  v_mul_u32_u24 v5, 37, v5")
        A("  v_lshrrev_b32 v5, 8, v5")
        A("  v_lshlrev_b32 v%d, 3, v5" % (64 + i))
    A("L_hnonce:")
    A("  s_sleep 24")
    for i in range(7):
        A("  buffer_load_dwordx2 v[%d:%d], v%d, s[24:27], 0 offen sc1" % (50 + 2 * i, 51 + 2 * i, 64 + i))
    A("  s_sub_u32 s35, s35, 1")
    A("  s_cmp_eq_u32 s35, 0")
    A("  s_cbranch_scc1 L_end")
    A("  s_waitcnt vmcnt(0)")
    A("  v_min3_u32 v6, v50, v51, v52")
    for r in range(53, 63, 2):
        A("  v_min3_u32 v6, v6, v%d, v%d" % (r, r + 1))
    A("  v_min_u32 v6, v6, v63")
    A("  v_cmp_eq_u32 vcc, 0, v6")
    A("  s_cbranch_vccnz L_hnonce")
    ST(2)
    A("  s_mov_b32 exec_lo, 0x01010101")
    A("  s_mov_b32 exec_hi, 0x01010101")
    A("L_hwait:")
    A("  buffer_load_dwordx4 v[16:19], v1, s[28:31], 0 offen sc1")
    A("  s_sub_u32 s35, s35, 1")
    A("  s_cmp_eq_u32 s35, 0")
    A("  s_cbranch_scc1 L_end")
    A("  s_waitcnt vmcnt(0)")
    if trig == 0:
        A("  v_cmp_eq_u64 vcc, v[18:19], v[50:51]")
        A("  s_cbranch_vccnz L_hgo")
    else:
        A("  v_cmp_ne_u64 vcc, v[18:19], v[50:51]")
        A("  s_cbranch_vccz L_hgo")
    A("  s_sleep %d" % asleep)
    A("  s_branch L_hwait")
    A("L_hgo:")
    A("  s_mov_b64 exec, -1")
    def ld2(i):
        A("  buffer_load_dwordx4 v[%d:%d], v1, s[28:31], %s offen offset:%d %s" % (16 + 4 * i, 19 + 4 * i, "0" if i < 4 else "s40", (i % 4) * 1024, hpol.replace("_", " ")))
    for i in range(7):
        ld2(i)
    A("L_hchk:")
    A("  s_waitcnt vmcnt(0)")
    for i in range(7):
        A("  v_cmp_ne_u64 s[%d:%d], v[%d:%d], v[%d:%d]" % (48 + 2 * i, 49 + 2 * i, 18 + 4 * i, 19 + 4 * i, 50 + 2 * i, 51 + 2 * i))
    A("  v_add_f32 v44, v16, v20")
    A("  v_add_f32 v45, v17, v21")
    A("  v_add_f32 v46, v24, v28")
    A("  v_add_f32 v47, v25, v29")
    A("  v_add_f32 v48, v32, v36")
    A("  v_add_f32 v49, v33, v37")
    A("  s_or_b64 s[42:43], s[48:49], s[50:51]")
    A("  v_add_f32 v44, v44, v40")
    A("  s_or_b64 s[44:45], s[52:53], s[54:55]")
    A("  v_add_f32 v45, v45, v41")
    A("  s_or_b64 s[46:47], s[56:57], s[58:59]")
    A("  v_add_f32 v46, v46, v48")
    A("  s_or_b64 s[42:43], s[42:43], s[60:61]")
    A("  v_add_f32 v47, v47, v49")
    A("  s_or_b64 s[44:45], s[44:45], s[46:47]")
    A("  v_add_f32 v44, v44, v46")
    A("  v_add_f32 v45, v45, v47")
    A("  s_or_b64 s[42:43], s[42:43], s[44:45]")
    A("  s_cbranch_scc0 L_hgot")
    if hsleep:
        A("  s_sleep %d" % hsleep)
    A("  s_sub_u32 s35, s35, 1")
    A("  s_cmp_eq_u32 s35, 0")
    A("  s_cbranch_scc1 L_hgot")
    for i in range(7):
        A("  s_mov_b64 exec, s[%d:%d]" % (48 + 2 * i, 49 + 2 * i))
        A("  s_cbranch_execz L_hskip%d" % i)
        ld2(i)
        A("L_hskip%d:" % i)
    A("  s_mov_b64 exec, -1")
    A("  s_branch L_hchk")
    A("L_hgot:")
    ST(3)
    A("  v_permlane32_swap_b32 v44, v45")
    A("  s_nop 1")
    A("  v_add_f32 v44, v44, v45")
    A("  s_nop 1")
    A("  v_add_f32_dpp v44, v44, v44 row_ror:8 row_mask:0xf bank_mask:0xf")
    A("  s_nop 1")
    A("  v_mov_b32 v45, v44")
    A("  s_nop 1")
    A("  v_permlane16_swap_b32 v44, v45")
    A("  s_nop 1")
    A("  v_add_f32 v44, v44, v45")
    A("  v_cvt_pk_bf16_f32 v44, v44, v44")
    A("  s_mov_b32 exec_lo, 0xff")
    A("  s_mov_b32 exec_hi, 0xff")
    A("  buffer_store_short v44, v3, s[20:23], 0 offen")
    if probe:
        A("  s_memrealtime s[44:45]")
        A("  v_readfirstlane_b32 s46, v50")
        A("  s_waitcnt lgkmcnt(0)")
        A("  s_sub_u32 s47, s44, s46")
        A("  s_mul_i32 s47, s47, %d" % probe)
        A("  s_min_u32 s47, s47, 20000")
        A("L_probe:")
        A("  s_memrealtime s[42:43]")
        A("  s_waitcnt lgkmcnt(0)")
        A("  s_sub_u32 s42, s42, s44")
        A("  s_cmp_lt_u32 s42, s47")
        A("  s_cbranch_scc1 L_probe")
    if stamps:
        ST(4)
        A("  s_waitcnt vmcnt(0)")
        ST(5)
        A("  s_cmp_lg_u32 s3, 0")
        A("  s_cbranch_scc1 L_end")
        STOUT(range(0, 6))
    A("L_end:")
    A("  s_endpgm")
    A('.section .rodata,"a"')
    A(".p2align 6")
    A(".amdhsa_kernel %s_kernel" % NAME)
    A("  .amdhsa_next_free_vgpr 96")
    A("  .amdhsa_next_free_sgpr 100")
    A("  .amdhsa_accum_offset 96")
    A("  .amdhsa_group_segment_fixed_size 0")
    A("  .amdhsa_kernarg_size 56")
    A("  .amdhsa_user_sgpr_count 2")
    A("  .amdhsa_user_sgpr_kernarg_segment_ptr 1")
    A("  .amdhsa_system_sgpr_workgroup_id_x 1")
    A("  .amdhsa_float_denorm_mode_32 3")
    A(".end_amdhsa_kernel")
    return "\n".join(o) + "\n"

if __name__ == "__main__":
    out = sys.argv[1]
    kw = {}
    for a in sys.argv[2:]:
        k, v = a.split("=")
        kw[k] = int(v) if v.isdigit() else v
    open(out, "w").write(gen(**kw))
```

```python
import sys
NAME = "standalone__glu_gated_bilinear__decode"
HDR = open('cdna_kernels/%s.s.ref' % NAME).read().split('; Override launch')[0]
MB2 = 0
MB1 = 64 * 7168
MBS = 56 * 8192
WSZ = MB1 + 2 * 56 * 8192
L_P = 0
L_A = 1024
L_H = 2048
L_N = 2304
L_C = 2312

def gen(stamps=0, pol="nt", hsleep=0, psleep=0, bar0=1, fastn=32, delta=3, so=0, nsleep=12, pre=2, asleep=4, fpol="sc1", poller=0, hpol="sc1", nat=6, noslow=0, probe=0, trig=0, scr=0, pp="", K=10):
    o = []
    A = o.append
    pol = "" if pol == "x" else " " + pol.replace("_", " ")
    SB = 72
    def ST(k):
        if stamps:
            A("  s_memrealtime s[%d:%d]" % (SB + 2 * k, SB + 1 + 2 * k))
    def SPIN(path):
        if stamps != 3 or not pp.startswith(path + "_"):
            return
        _, a, b = pp.split("_")
        A("  s_memrealtime s[44:45]")
        A("  s_waitcnt lgkmcnt(0) vmcnt(0)")
        if a == "skew":
            A("  s_mov_b64 exec, -1")
            A("  v_lshlrev_b32 v1, 3, v0")
            A("  buffer_load_dword v2, v1, s[24:27], 0 offen sc1")
            A("  s_waitcnt vmcnt(0)")
            for i in range(8):
                A("  v_readlane_b32 s%d, v2, %d" % (48 + i, i))
            A("  s_nop 3")
            A("  s_mov_b32 s46, s48")
            A("  s_mov_b32 s47, s48")
            for i in range(1, 8):
                A("  s_min_u32 s46, s46, s%d" % (48 + i))
                A("  s_max_u32 s47, s47, s%d" % (48 + i))
            if b == "end":
                A("  s_sub_u32 s47, s44, s46")
            else:
                A("  s_sub_u32 s47, s47, s46")
        else:
            A("  s_sub_u32 s47, s%d, s%d" % (SB + 2 * int(b), SB + 2 * int(a)))
        A("  s_mul_i32 s47, s47, %d" % K)
        A("  s_min_u32 s47, s47, 40000")
        A("L_spin%s:" % path)
        A("  s_memrealtime s[42:43]")
        A("  s_waitcnt lgkmcnt(0)")
        A("  s_sub_u32 s42, s42, s44")
        A("  s_cmp_lt_u32 s42, s47")
        A("  s_cbranch_scc1 L_spin%s" % path)
    def STOUT(ks):
        if not stamps or stamps == 3:
            return
        A("  s_waitcnt lgkmcnt(0)")
        A("  s_mov_b32 s30, 0x10000000")
        A("  s_mov_b64 exec, 1")
        A("  s_add_u32 s33, s2, 224")
        A("  s_and_b32 s33, s33, 255")
        A("  s_lshl_b32 s33, s33, 7")
        A("  s_add_u32 s33, s33, 0x8000000")
        A("  v_mov_b32 v5, s33")
        for k in ks:
            A("  v_mov_b32 v6, s%d" % (SB + 2 * k))
            A("  v_mov_b32 v7, s%d" % (SB + 1 + 2 * k))
            A("  buffer_store_dwordx2 v[6:7], v5, s[28:31], 0 offen offset:%d" % (8 * k))
            A("  s_nop 1")
    def REDUCE8(a):
        for k in range(4):
            A("  v_permlane32_swap_b32 v%d, v%d" % (a + k, a + 4 + k))
        A("  s_nop 0")
        for k in range(4):
            A("  v_add_f32 v%d, v%d, v%d" % (a + k, a + k, a + 4 + k))
        A("  s_nop 0")
        for k in range(2):
            A("  v_permlane16_swap_b32 v%d, v%d" % (a + k, a + 2 + k))
        A("  s_nop 0")
        for k in range(2):
            A("  v_add_f32 v%d, v%d, v%d" % (a + k, a + k, a + 2 + k))
        A("  s_nop 0")
        for k in range(2):
            A("  v_add_f32_dpp v%d, v%d, v%d row_ror:8 row_mask:0xf bank_mask:0xf" % (12 + k, a + k, a + k))
    def NONCE_ISSUE():
        A("  s_load_dwordx2 s[70:71], s[24:25], s65")
    def NONCE_CHECK(tag):
        A("  s_min_u32 s37, s70, s71")
        A("  s_cmp_eq_u32 s37, 0")
        A("  s_cbranch_scc1 L_nslow%s" % tag)
        A("L_nok%s:" % tag)
        A("  v_mov_b32 v14, s70")
        A("  v_mov_b32 v15, s71")
    def NONCE_SLOW(tag):
        A("L_nslow%s:" % tag)
        A("  s_add_u32 s65, s65, 64")
        A("  s_cmp_ge_u32 s65, 256")
        A("  s_cbranch_scc1 L_nvec%s" % tag)
        A("  s_load_dwordx2 s[70:71], s[24:25], s65")
        A("  s_waitcnt lgkmcnt(0)")
        A("  s_min_u32 s37, s70, s71")
        A("  s_cmp_eq_u32 s37, 0")
        A("  s_cbranch_scc0 L_nok%s" % tag)
        A("  s_sleep 4")
        A("  s_branch L_nslow%s" % tag)
        A("L_nvec%s:" % tag)
        A("  s_and_b32 s37, s65, 63")
        A("  buffer_load_dwordx2 v[14:15], v11, s[24:27], s37 offen sc1")
        A("  s_sub_u32 s35, s35, 1")
        A("  s_waitcnt vmcnt(0)")
        A("  v_readfirstlane_b32 s70, v14")
        A("  v_readfirstlane_b32 s71, v15")
        A("  s_cmp_eq_u32 s35, 0")
        A("  s_cbranch_scc1 L_nok%s" % tag)
        A("  s_min_u32 s37, s70, s71")
        A("  s_cmp_eq_u32 s37, 0")
        A("  s_cbranch_scc1 L_nvec%s" % tag)
        A("  s_branch L_nok%s" % tag)
    A(HDR.rstrip('\n'))
    A("; @launch grid=(256,1,1) block=(512,1,1) lds=4096")
    A('.amdgcn_target "amdgcn-amd-amdhsa--gfx950"')
    A(".text")
    A(".globl %s_kernel" % NAME)
    A(".p2align 8")
    A(".type %s_kernel,@function" % NAME)
    A("%s_kernel:" % NAME)
    ST(0)
    A("  s_load_dwordx2 s[4:5], s[0:1], 0")
    A("  s_load_dwordx2 s[8:9], s[0:1], 8")
    A("  s_load_dwordx2 s[12:13], s[0:1], 16")
    A("  s_load_dwordx2 s[16:17], s[0:1], 24")
    A("  s_load_dwordx2 s[20:21], s[0:1], 32")
    A("  s_load_dwordx2 s[24:25], s[0:1], 40")
    A("  s_load_dwordx2 s[28:29], s[0:1], 48")
    A("  v_readfirstlane_b32 s3, v0")
    A("  v_mov_b32 v11, 0")
    A("  v_mov_b32 v12, 0")
    A("  v_mov_b32 v13, 0")
    A("  v_mov_b32 v14, 0")
    A("  v_mov_b32 v15, 0")
    A("  ds_write_b32 v11, v11 offset:%d" % L_C)
    A("  s_movk_i32 s6, 2048")
    A("  s_mov_b32 s7, 0x20000")
    A("  s_mov_b32 s10, 7340032")
    A("  s_mov_b32 s11, s7")
    A("  s_mov_b32 s18, s10")
    A("  s_mov_b32 s19, s7")
    A("  s_movk_i32 s22, 2048")
    A("  s_mov_b32 s23, s7")
    A("  s_movk_i32 s26, 256")
    A("  s_mov_b32 s27, s7")
    A("  s_mov_b32 s30, %d" % WSZ)
    A("  s_mov_b32 s31, s7")
    A("  s_lshr_b32 s3, s3, 6")
    A("  s_mov_b32 s35, 400000")
    A("  v_and_b32 v0, 63, v0")
    if scr:
        A("  s_lshr_b32 s33, s2, 3")
        A("  s_and_b32 s33, s33, 7")
        A("  s_xor_b32 s2, s2, s33")
    A("  s_cmp_lt_u32 s2, 32")
    A("  s_cbranch_scc1 L_helper")
    A("  s_cmp_ge_u32 s2, 256")
    A("  s_cbranch_scc1 L_end")
    A("  s_mov_b32 s38, 0x05040100")
    A("  s_mov_b32 s39, 0x07060302")
    A("  s_and_b32 s32, s2, 7")
    A("  s_lshl_b32 s65, s32, 3")
    A("  s_lshr_b32 s33, s2, 5")
    A("  s_sub_u32 s33, s33, 1")
    A("  s_xor_b32 s56, s33, 1")
    A("  s_cmp_eq_u32 s33, 6")
    A("  s_cselect_b32 s56, s33, s56")
    A("  s_cmp_eq_u32 s32, 3")
    A("  s_cselect_b32 s57, 1, 0")
    A("  s_add_u32 s33, s33, s57")
    A("  s_add_u32 s56, s56, s57")
    A("  s_cmp_eq_u32 s33, 7")
    A("  s_cselect_b32 s33, 0, s33")
    A("  s_cmp_eq_u32 s56, 7")
    A("  s_cselect_b32 s56, 0, s56")
    A("  s_mul_i32 s32, s32, 7")
    A("  s_add_u32 s33, s33, s32")
    A("  s_add_u32 s56, s56, s32")
    A("  s_lshr_b32 s34, s2, 3")
    A("  s_and_b32 s34, s34, 3")
    A("  v_lshrrev_b32 v2, 3, v0")
    A("  v_and_b32 v3, 7, v0")
    A("  s_cmp_ge_u32 s3, 4")
    A("  s_cbranch_scc1 L_ph2")
    A("  s_and_b32 s57, s3, 1")
    A("  s_lshl_b32 s36, s34, 1")
    A("  s_add_u32 s57, s57, s36")
    A("  s_cmp_ge_u32 s3, 2")
    A("  s_cselect_b32 s58, s56, s33")
    A("  s_mul_i32 s36, s57, %d" % (128 * 7168))
    A("  s_lshl_b32 s37, s58, 7")
    A("  s_add_u32 s36, s36, s37")
    A("  s_mov_b32 s37, %d" % (16 * 7168))
    A("  v_mul_lo_u32 v1, v2, s37")
    A("  v_lshl_add_u32 v1, v3, 4, v1")
    A("  v_add_u32 v1, s36, v1")
    A("  s_lshl_b32 s37, s57, 8")
    A("  v_lshl_add_u32 v4, v2, 5, s37")
    A("  s_movk_i32 s41, 7168")
    for i in range(2, 16):
        A("  s_add_u32 s%d, s%d, s41" % (40 + i, 39 + i))
    A("  v_lshrrev_b32 v6, 4, v0")
    A("  v_lshl_add_u32 v6, v3, 2, v6")
    A("  s_lshl_b32 s37, s58, 13")
    A("  s_lshl_b32 s59, s57, 10")
    A("  s_add_u32 s37, s37, s59")
    A("  s_and_b32 s59, s3, 2")
    A("  s_lshl_b32 s59, s59, 8")
    A("  s_add_u32 s37, s37, s59")
    A("  s_add_u32 s37, s37, %d" % MB1)
    A("  v_lshlrev_b32 v5, 4, v6")
    A("  v_add_u32 v5, s37, v5")
    A("  s_lshl_b32 s36, s33, 13")
    A("  s_add_u32 s36, s36, %d" % MB1)
    A("  s_lshl_b32 s37, s3, 11")
    A("  v_lshl_add_u32 v10, v0, 5, s37")
    A("  s_cmp_ge_u32 s3, 2")
    A("  s_waitcnt lgkmcnt(0)")
    A("  s_cselect_b32 s8, s12, s8")
    A("  s_cselect_b32 s9, s13, s9")
    if bar0 == 0 or bar0 == 9:
        A("  s_barrier")
    ST(1)
    if pre == 1:
        A("  buffer_load_dword v13, v10, s[28:31], s36 offen sc1")
    if pre == 2:
        A("  buffer_store_dwordx4 v[12:15], v5, s[28:31], 0 offen")
    A("  buffer_load_dwordx4 v[24:27], v4, s[4:7], 0 offen")
    A("  buffer_load_dwordx4 v[28:31], v4, s[4:7], 0 offen offset:16")
    base = 32
    for i in range(16):
        reg = base + i * 4
        A("  buffer_load_dwordx4 v[%d:%d], v1, s[8:11], %s offen%s" % (reg, reg + 3, "0" if i == 0 else "s%d" % (40 + i), pol))
    if bar0 == 1:
        A("  s_barrier")
    for k in range(8):
        A("  v_mov_b32 v%d, 0" % (16 + k))
    A("  s_mov_b32 s64, %d" % MBS)
    A("  s_getreg_b32 s41, hwreg(HW_REG_XCC_ID)")
    A("  s_and_b32 s41, s41, 15")
    A("  s_lshl_b32 s41, s41, 27")
    A("  s_lshl_b32 s37, s3, 7")
    A("  v_lshl_add_u32 v9, v6, 2, s37")
    A("  v_lshlrev_b32 v8, 1, v9")
    A("  v_lshlrev_b32 v10, 4, v0")
    A("  v_add_u32 v10, s36, v10")
    A("  s_movk_i32 s40, 4096")
    A("  v_mov_b32 v2, 1")
    ST(2)
    if so == 1:
        A("  s_waitcnt vmcnt(0)")
        ST(3)
        A("  s_cmp_lg_u32 s3, 3")
        A("  s_cbranch_scc1 L_end")
        STOUT(range(0, 4))
        A("  s_endpgm")
    for k in range(8):
        A("  s_waitcnt vmcnt(%d)" % (14 - 2 * k))
        if bar0 >= 2 and bar0 < 9 and k == bar0:
            A("  s_barrier")
        if k == nat:
            NONCE_ISSUE()
        r0 = base + 8 * k
        r1 = r0 + 4
        for c in range(4):
            A("  v_perm_b32 v6, v%d, v%d, s38" % (r1 + c, r0 + c))
            A("  v_perm_b32 v7, v%d, v%d, s39" % (r1 + c, r0 + c))
            A("  v_dot2c_f32_bf16 v%d, v%d, v6" % (16 + 2 * c, 24 + k))
            A("  v_dot2c_f32_bf16 v%d, v%d, v7" % (16 + 2 * c + 1, 24 + k))
    ST(3)
    A("  s_waitcnt lgkmcnt(0)")
    NONCE_CHECK("a")
    A("  v_or_b32 v15, s41, v15")
    REDUCE8(16)
    A("  s_mov_b32 exec_lo, 0x00ff00ff")
    A("  s_mov_b32 exec_hi, 0x00ff00ff")
    A("  buffer_store_dwordx4 v[12:15], v5, s[28:31], 0 offen")
    ST(5)
    A("  ds_write_b64 v8, v[12:13] offset:%d" % L_P)
    A("  ds_write_b32 v9, v5 offset:%d" % L_A)
    A("  s_mov_b64 exec, 1")
    A("  ds_add_rtn_u32 v2, v11, v2 offset:%d" % L_C)
    A("  s_mov_b64 exec, -1")
    A("  s_waitcnt lgkmcnt(0)")
    A("  v_readfirstlane_b32 s47, v2")
    A("  s_sub_u32 s46, s35, %d" % fastn)
    A("  v_lshlrev_b32 v9, 2, v0")
    A("  s_cmp_lg_u32 s47, 3")
    A("  s_cbranch_scc1 L_end")
    ST(4)
    if so >= 2:
        STOUT(range(0, 6))
        A("  s_endpgm")
    def ld1(s, flav):
        A("  buffer_load_dwordx4 v[%d:%d], v10, s[28:31], %s offen offset:%d %s" % (32 + 4 * s, 35 + 4 * s, "0" if s < 4 else "s40", (s % 4) * 1024, flav))
    for s in range(8):
        ld1(s, fpol.replace("_", " "))
    A("L_poll1chk:")
    A("  s_waitcnt vmcnt(0)")
    for s in range(8):
        A("  v_cmp_ne_u64 s[%d:%d], v[%d:%d], v[14:15]" % (48 + 2 * s, 49 + 2 * s, 34 + 4 * s, 35 + 4 * s))
    for s in range(0, 8, 2):
        A("  v_add_f32 v%d, v%d, v%d" % (16 + s, 32 + 4 * s, 36 + 4 * s))
        A("  v_add_f32 v%d, v%d, v%d" % (17 + s, 33 + 4 * s, 37 + 4 * s))
    A("  s_or_b64 s[42:43], s[48:49], s[50:51]")
    A("  v_add_f32 v16, v16, v18")
    A("  s_or_b64 s[44:45], s[52:53], s[54:55]")
    A("  v_add_f32 v17, v17, v19")
    A("  s_or_b64 s[66:67], s[56:57], s[58:59]")
    A("  v_add_f32 v20, v20, v22")
    A("  s_or_b64 s[68:69], s[60:61], s[62:63]")
    A("  v_add_f32 v21, v21, v23")
    A("  s_or_b64 s[42:43], s[42:43], s[44:45]")
    A("  v_add_f32 v16, v16, v20")
    A("  s_or_b64 s[66:67], s[66:67], s[68:69]")
    A("  v_add_f32 v17, v17, v21")
    A("  v_cvt_pk_bf16_f32 v18, v16, v17")
    A("  v_mov_b32 v19, v18")
    A("  s_or_b64 s[42:43], s[42:43], s[66:67]")
    A("  s_cbranch_scc0 L_got1")
    A("  s_sub_u32 s35, s35, 1")
    A("  s_cmp_le_u32 s35, s46")
    A("  s_cbranch_scc1 L_slowpoll")
    A("L_fastround:")
    for s in range(8):
        A("  s_mov_b64 exec, s[%d:%d]" % (48 + 2 * s, 49 + 2 * s))
        A("  s_cbranch_execz L_p1skip%d" % s)
        ld1(s, fpol.replace("_", " "))
        A("L_p1skip%d:" % s)
    A("  s_mov_b64 exec, -1")
    A("  s_branch L_poll1chk")
    A("L_slowpoll:")
    A("  s_cmp_eq_u32 s35, 0")
    A("  s_cbranch_scc1 L_got1")
    A("  s_cmp_lg_u32 s35, s46")
    A("  s_cbranch_scc1 L_noslow")
    A("  v_lshlrev_b32 v8, 3, v0")
    A("  ds_read_b64 v[20:21], v8 offset:%d" % L_P)
    A("  ds_read_b64 v[24:25], v8 offset:%d" % (L_P + 512))
    A("  ds_read_b32 v5, v9 offset:%d" % L_A)
    A("  ds_read_b32 v6, v9 offset:%d" % (L_A + 256))
    A("  v_mov_b32 v22, s70")
    A("  v_mov_b32 v23, s71")
    A("  v_mov_b32 v26, s70")
    A("  v_mov_b32 v27, s71")
    A("  v_add_u32 v4, %d, v10" % MBS)
    A("  s_waitcnt lgkmcnt(0)")
    A("  buffer_store_dwordx4 v[20:23], v5, s[28:31], s64 offen sc1")
    A("  buffer_store_dwordx4 v[24:27], v6, s[28:31], s64 offen sc1")
    A("L_noslow:")
    A("  s_bitcmp1_b32 s35, 0")
    A("  s_cbranch_scc1 L_fastround")
    for s in range(8):
        A("  s_mov_b64 exec, s[%d:%d]" % (48 + 2 * s, 49 + 2 * s))
        A("  s_cbranch_execz L_p1sk%d" % s)
        A("  buffer_load_dwordx4 v[%d:%d], v4, s[28:31], %s offen offset:%d sc1" % (32 + 4 * s, 35 + 4 * s, "0" if s < 4 else "s40", (s % 4) * 1024))
        A("  s_waitcnt vmcnt(0)")
        A("  v_xor_b32 v%d, s41, v%d" % (35 + 4 * s, 35 + 4 * s))
        A("L_p1sk%d:" % s)
    A("  s_mov_b64 exec, -1")
    A("  s_branch L_poll1chk")
    A("L_got1:")
    ST(6)
    if stamps == 1:
        A("  s_sub_u32 s47, s46, s35")
        A("  s_add_u32 s47, s47, %d" % fastn)
        A("  s_add_u32 s74, s72, s47")
        A("  s_addc_u32 s75, s73, 0")
    A("  v_permlane32_swap_b32 v18, v19")
    A("  s_nop 1")
    A("  v_lshlrev_b32 v16, 16, v18")
    A("  v_and_b32 v17, 0xffff0000, v18")
    A("  v_lshlrev_b32 v20, 16, v19")
    A("  v_and_b32 v21, 0xffff0000, v19")
    A("  v_mul_f32 v16, v16, v20")
    A("  v_mul_f32 v17, v17, v21")
    A("  v_cvt_pk_bf16_f32 v16, v16, v17")
    A("  ds_write_b32 v9, v16 offset:%d" % L_H)
    if bar0 == 9:
        A("  ds_write_b64 v11, v[14:15] offset:%d" % L_N)
    A("  s_waitcnt lgkmcnt(0)")
    ST(7)
    A("  s_barrier")
    STOUT(range(0, 8))
    SPIN("w")
    A("  s_endpgm")
    NONCE_SLOW("a")
    if bar0 != 9:
        NONCE_SLOW("b")
    A("L_ph2:")
    A("  s_lshl_b32 s36, s33, 17")
    A("  s_lshl_b32 s37, s34, 9")
    A("  s_add_u32 s36, s36, s37")
    A("  s_and_b32 s57, s3, 3")
    A("  s_lshl_b32 s37, s57, 7")
    A("  s_add_u32 s36, s36, s37")
    A("  v_lshlrev_b32 v1, 14, v2")
    A("  v_lshl_add_u32 v1, v3, 4, v1")
    A("  v_add_u32 v1, s36, v1")
    for j in range(1, 4):
        A("  s_movk_i32 s%d, %d" % (48 + j, j * 4096))
    A("  s_waitcnt lgkmcnt(0)")
    if bar0 != 9:
        A("  s_barrier")
    wbase = 32
    for j in range(8):
        reg = wbase + j * 4
        sof = "0" if j // 2 == 0 else "s%d" % (48 + j // 2)
        A("  buffer_load_dwordx4 v[%d:%d], v1, s[16:19], %s offen offset:%d%s" % (reg, reg + 3, sof, (j % 2) * 2048, pol))
    if bar0 == 9:
        A("  s_barrier")
    ST(8)
    A("  v_lshlrev_b32 v6, 4, v2")
    A("  v_lshrrev_b32 v9, 1, v3")
    A("  s_movk_i32 s37, 7168")
    A("  v_mul_lo_u32 v9, v9, s37")
    A("  v_and_b32 v5, 1, v3")
    A("  v_lshl_add_u32 v9, v5, 6, v9")
    A("  v_lshrrev_b32 v5, 4, v0")
    A("  v_lshl_add_u32 v9, v5, 4, v9")
    A("  s_lshl_b32 s36, s34, 2")
    A("  s_add_u32 s36, s36, s57")
    A("  s_mul_i32 s36, s36, %d" % (4 * 7168))
    A("  s_lshl_b32 s37, s33, 7")
    A("  s_add_u32 s36, s36, s37")
    A("  v_add_u32 v9, s36, v9")
    for k in range(8):
        A("  v_mov_b32 v%d, 0" % (16 + k))
    pbase = 64
    for j in range(4):
        A("  s_waitcnt vmcnt(%d)" % (6 - 2 * j))
        if j == 3 and bar0 != 9:
            NONCE_ISSUE()
        r0 = wbase + 8 * j
        r1 = r0 + 4
        for c in range(4):
            A("  v_perm_b32 v%d, v%d, v%d, s38" % (pbase + 8 * j + 2 * c, r1 + c, r0 + c))
            A("  v_perm_b32 v%d, v%d, v%d, s39" % (pbase + 8 * j + 2 * c + 1, r1 + c, r0 + c))
    ST(9)
    if so:
        A("  s_cmp_lg_u32 s3, 7")
        A("  s_cbranch_scc1 L_end")
        STOUT(range(8, 10))
        A("  s_endpgm")
    A("  s_waitcnt lgkmcnt(0)")
    if bar0 != 9:
        NONCE_CHECK("b")
    A("  s_barrier")
    A("  ds_read_b128 v[24:27], v6 offset:%d" % L_H)
    if bar0 == 9:
        A("  ds_read_b64 v[14:15], v11 offset:%d" % L_N)
    A("  s_waitcnt lgkmcnt(0)")
    for j in range(4):
        for c in range(8):
            A("  v_dot2c_f32_bf16 v%d, v%d, v%d" % (16 + c, 24 + j, pbase + 8 * j + c))
    A("  s_nop 0")
    REDUCE8(16)
    A("  s_mov_b32 exec_lo, 0x00ff00ff")
    A("  s_mov_b32 exec_hi, 0x00ff00ff")
    A("  buffer_store_dwordx4 v[12:15], v9, s[28:31], 0 offen sc1")
    if stamps:
        ST(10)
        A("  s_waitcnt vmcnt(0)")
        ST(11)
        A("  s_cmp_lg_u32 s3, 7")
        A("  s_cbranch_scc1 L_end")
        STOUT(range(8, 12))
        SPIN("p")
    A("  s_endpgm")
    A("L_helper:")
    if so == 1:
        A("  s_endpgm")
    A("  s_cmp_ge_u32 s3, 3")
    A("  s_cbranch_scc1 L_end")
    A("  s_cmp_lt_u32 s3, 2")
    A("  s_cbranch_scc1 L_hred")
    A("  s_cmp_ge_u32 s2, 8")
    A("  s_cbranch_scc1 L_end")
    A("  s_memrealtime s[44:45]")
    A("  s_lshl_b32 s37, s2, 3")
    A("  v_lshl_add_u32 v16, v0, 6, s37")
    A("  s_mov_b64 exec, 15")
    A("  s_waitcnt lgkmcnt(0)")
    A("  s_or_b32 s44, s44, 1")
    A("  s_and_b32 s45, s45, 0x07ffffff")
    A("  s_bitset1_b32 s45, 31")
    A("  v_mov_b32 v14, s44")
    A("  v_mov_b32 v15, s45")
    A("  buffer_store_dwordx2 v[14:15], v16, s[24:27], 0 offen sc1")
    if stamps:
        A("  s_waitcnt vmcnt(0)")
        ST(6)
        STOUT([6])
    A("  s_endpgm")
    A("L_hred:")
    if so == 2 or so == 4:
        A("  s_endpgm")
    if so == 3:
        A("  s_mov_b32 s35, 30")
    A("  s_lshl_b32 s32, s2, 1")
    A("  s_add_u32 s32, s32, s3")
    A("  s_mul_i32 s33, s32, 7168")
    A("  v_lshlrev_b32 v1, 4, v0")
    A("  v_add_u32 v1, s33, v1")
    A("  s_movk_i32 s40, 4096")
    A("  v_and_b32 v3, 7, v0")
    A("  v_lshlrev_b32 v3, 2, v3")
    A("  v_lshrrev_b32 v4, 5, v0")
    A("  v_lshl_add_u32 v3, v4, 1, v3")
    A("  s_lshl_b32 s33, s32, 5")
    A("  v_add_u32 v3, s33, v3")
    A("  s_waitcnt lgkmcnt(0)")
    ST(1)
    A("  v_lshrrev_b32 v4, 3, v0")
    for i in range(7):
        A("  v_add_u32 v5, %d, v4" % (8 * i))
        A("  v_mul_u32_u24 v5, 37, v5")
        A("  v_lshrrev_b32 v5, 8, v5")
        A("  v_lshlrev_b32 v%d, 3, v5" % (64 + i))
    A("L_hnonce:")
    A("  s_sleep 24")
    for i in range(7):
        A("  buffer_load_dwordx2 v[%d:%d], v%d, s[24:27], 0 offen sc1" % (50 + 2 * i, 51 + 2 * i, 64 + i))
    A("  s_sub_u32 s35, s35, 1")
    A("  s_cmp_eq_u32 s35, 0")
    A("  s_cbranch_scc1 L_end")
    A("  s_waitcnt vmcnt(0)")
    A("  v_min3_u32 v6, v50, v51, v52")
    for r in range(53, 63, 2):
        A("  v_min3_u32 v6, v6, v%d, v%d" % (r, r + 1))
    A("  v_min_u32 v6, v6, v63")
    A("  v_cmp_eq_u32 vcc, 0, v6")
    A("  s_cbranch_vccnz L_hnonce")
    ST(2)
    A("  s_mov_b32 exec_lo, 0x01010101")
    A("  s_mov_b32 exec_hi, 0x01010101")
    A("L_hwait:")
    if hpol == "atom":
        A("  v_mov_b32 v18, 0")
        A("  v_mov_b32 v19, 0")
        A("  buffer_atomic_or_x2 v[18:19], v1, s[28:31], 0 offen offset:8 sc0 sc1")
    else:
        A("  buffer_load_dwordx4 v[16:19], v1, s[28:31], 0 offen sc1")
    A("  s_sub_u32 s35, s35, 1")
    A("  s_cmp_eq_u32 s35, 0")
    A("  s_cbranch_scc1 L_end")
    A("  s_waitcnt vmcnt(0)")
    if trig == 0:
        A("  v_cmp_eq_u64 vcc, v[18:19], v[50:51]")
        A("  s_cbranch_vccnz L_hgo")
    else:
        A("  v_cmp_ne_u64 vcc, v[18:19], v[50:51]")
        A("  s_cbranch_vccz L_hgo")
    A("  s_sleep %d" % asleep)
    A("  s_branch L_hwait")
    A("L_hgo:")
    A("  s_mov_b64 exec, -1")
    def ld2(i):
        if hpol == "atom":
            for r in range(4):
                A("  v_mov_b32 v%d, 0" % (16 + 4 * i + r))
            A("  buffer_atomic_or_x2 v[%d:%d], v1, s[28:31], %s offen offset:%d sc0 sc1" % (18 + 4 * i, 19 + 4 * i, "0" if i < 4 else "s40", (i % 4) * 1024 + 8))
            A("  buffer_atomic_or_x2 v[%d:%d], v1, s[28:31], %s offen offset:%d sc0 sc1" % (16 + 4 * i, 17 + 4 * i, "0" if i < 4 else "s40", (i % 4) * 1024))
            return
        A("  buffer_load_dwordx4 v[%d:%d], v1, s[28:31], %s offen offset:%d %s" % (16 + 4 * i, 19 + 4 * i, "0" if i < 4 else "s40", (i % 4) * 1024, hpol.replace("_", " ")))
    for i in range(7):
        ld2(i)
    A("L_hchk:")
    A("  s_waitcnt vmcnt(0)")
    for i in range(7):
        A("  v_cmp_ne_u64 s[%d:%d], v[%d:%d], v[%d:%d]" % (48 + 2 * i, 49 + 2 * i, 18 + 4 * i, 19 + 4 * i, 50 + 2 * i, 51 + 2 * i))
    A("  v_add_f32 v44, v16, v20")
    A("  v_add_f32 v45, v17, v21")
    A("  v_add_f32 v46, v24, v28")
    A("  v_add_f32 v47, v25, v29")
    A("  v_add_f32 v48, v32, v36")
    A("  v_add_f32 v49, v33, v37")
    A("  s_or_b64 s[42:43], s[48:49], s[50:51]")
    A("  v_add_f32 v44, v44, v40")
    A("  s_or_b64 s[44:45], s[52:53], s[54:55]")
    A("  v_add_f32 v45, v45, v41")
    A("  s_or_b64 s[46:47], s[56:57], s[58:59]")
    A("  v_add_f32 v46, v46, v48")
    A("  s_or_b64 s[42:43], s[42:43], s[60:61]")
    A("  v_add_f32 v47, v47, v49")
    A("  s_or_b64 s[44:45], s[44:45], s[46:47]")
    A("  v_add_f32 v44, v44, v46")
    A("  v_add_f32 v45, v45, v47")
    A("  s_or_b64 s[42:43], s[42:43], s[44:45]")
    A("  s_cbranch_scc0 L_hgot")
    if hsleep:
        A("  s_sleep %d" % hsleep)
    A("  s_sub_u32 s35, s35, 1")
    A("  s_cmp_eq_u32 s35, 0")
    A("  s_cbranch_scc1 L_hgot")
    for i in range(7):
        A("  s_mov_b64 exec, s[%d:%d]" % (48 + 2 * i, 49 + 2 * i))
        A("  s_cbranch_execz L_hskip%d" % i)
        ld2(i)
        A("L_hskip%d:" % i)
    A("  s_mov_b64 exec, -1")
    A("  s_branch L_hchk")
    A("L_hgot:")
    ST(3)
    A("  v_permlane32_swap_b32 v44, v45")
    A("  s_nop 1")
    A("  v_add_f32 v44, v44, v45")
    A("  s_nop 1")
    A("  v_add_f32_dpp v44, v44, v44 row_ror:8 row_mask:0xf bank_mask:0xf")
    A("  s_nop 1")
    A("  v_mov_b32 v45, v44")
    A("  s_nop 1")
    A("  v_permlane16_swap_b32 v44, v45")
    A("  s_nop 1")
    A("  v_add_f32 v44, v44, v45")
    A("  v_cvt_pk_bf16_f32 v44, v44, v44")
    A("  s_mov_b32 exec_lo, 0xff")
    A("  s_mov_b32 exec_hi, 0xff")
    A("  buffer_store_short v44, v3, s[20:23], 0 offen")
    if probe:
        A("  s_memrealtime s[44:45]")
        A("  v_readfirstlane_b32 s46, v50")
        A("  s_waitcnt lgkmcnt(0)")
        A("  s_sub_u32 s47, s44, s46")
        A("  s_mul_i32 s47, s47, %d" % probe)
        A("  s_min_u32 s47, s47, 20000")
        A("L_probe:")
        A("  s_memrealtime s[42:43]")
        A("  s_waitcnt lgkmcnt(0)")
        A("  s_sub_u32 s42, s42, s44")
        A("  s_cmp_lt_u32 s42, s47")
        A("  s_cbranch_scc1 L_probe")
    if stamps:
        ST(4)
        A("  s_waitcnt vmcnt(0)")
        ST(5)
        A("  s_cmp_lg_u32 s3, 0")
        A("  s_cbranch_scc1 L_end")
        STOUT(range(0, 6))
        SPIN("h")
    A("L_end:")
    A("  s_endpgm")
    A('.section .rodata,"a"')
    A(".p2align 6")
    A(".amdhsa_kernel %s_kernel" % NAME)
    A("  .amdhsa_next_free_vgpr 96")
    A("  .amdhsa_next_free_sgpr 100")
    A("  .amdhsa_accum_offset 96")
    A("  .amdhsa_group_segment_fixed_size 0")
    A("  .amdhsa_kernarg_size 56")
    A("  .amdhsa_user_sgpr_count 2")
    A("  .amdhsa_user_sgpr_kernarg_segment_ptr 1")
    A("  .amdhsa_system_sgpr_workgroup_id_x 1")
    A("  .amdhsa_float_denorm_mode_32 3")
    A(".end_amdhsa_kernel")
    return "\n".join(o) + "\n"

if __name__ == "__main__":
    out = sys.argv[1]
    kw = {}
    for a in sys.argv[2:]:
        k, v = a.split("=")
        kw[k] = int(v) if v.isdigit() else v
    open(out, "w").write(gen(**kw))
```

```python
import sys
NAME = "standalone__glu_gated_bilinear__decode"
HDR = open('cdna_kernels/%s.s.ref' % NAME).read().split('; Override launch')[0]
MB1 = 64 * 7168
MBS = 56 * 8192
MBH = MB1 + 2 * MBS
WSZ = MBH + 56 * 256
L_P = 0
L_A = 1024
L_H = 2048
L_C = 2304
L_D = 2308
L_F = 2312

def gen(stamps=0, pol="nt", bar0=8, fastn=32, pre=2, asleep=4, nat=6, scr=0, warm=1, probe=0, poller=3, dset=0x4352, spol="x", opol="x", wsplit=3, cas=1, wd=40, hs=0, hn=100, nohh=0, trig=0, hsl=0):
    o = []
    A = o.append
    pol = "" if pol == "x" else " " + pol.replace("_", " ")
    spol = "" if spol == "x" else " " + spol.replace("_", " ")
    opol = "" if opol == "x" else " " + opol.replace("_", " ")
    SB = 72
    def ST(k):
        if stamps:
            A("  s_memrealtime s[%d:%d]" % (SB + 2 * k, SB + 1 + 2 * k))
    def STOUT(ks):
        if not stamps:
            return
        A("  s_waitcnt lgkmcnt(0)")
        A("  s_mov_b32 s30, 0x10000000")
        A("  s_mov_b64 exec, 1")
        A("  s_add_u32 s33, s2, 224")
        A("  s_and_b32 s33, s33, 255")
        A("  s_lshl_b32 s33, s33, 7")
        A("  s_add_u32 s33, s33, 0x8000000")
        A("  v_mov_b32 v5, s33")
        for k in ks:
            A("  v_mov_b32 v6, s%d" % (SB + 2 * k))
            A("  v_mov_b32 v7, s%d" % (SB + 1 + 2 * k))
            A("  buffer_store_dwordx2 v[6:7], v5, s[28:31], 0 offen offset:%d" % (8 * k))
            A("  s_nop 1")
    def REDUCE8(a):
        for k in range(4):
            A("  v_permlane32_swap_b32 v%d, v%d" % (a + k, a + 4 + k))
        A("  s_nop 0")
        for k in range(4):
            A("  v_add_f32 v%d, v%d, v%d" % (a + k, a + k, a + 4 + k))
        A("  s_nop 0")
        for k in range(2):
            A("  v_permlane16_swap_b32 v%d, v%d" % (a + k, a + 2 + k))
        A("  s_nop 0")
        for k in range(2):
            A("  v_add_f32 v%d, v%d, v%d" % (a + k, a + k, a + 2 + k))
        A("  s_nop 0")
        for k in range(2):
            A("  v_add_f32_dpp v%d, v%d, v%d row_ror:8 row_mask:0xf bank_mask:0xf" % (12 + k, a + k, a + k))
    def NONCE_ISSUE():
        A("  s_load_dwordx2 s[70:71], s[24:25], s65")
    def NONCE_CHECK(tag):
        A("  s_min_u32 s37, s70, s71")
        A("  s_cmp_eq_u32 s37, 0")
        A("  s_cbranch_scc1 L_nslow%s" % tag)
        A("L_nok%s:" % tag)
        A("  v_mov_b32 v14, s70")
        A("  v_mov_b32 v15, s71")
    def NONCE_SLOW(tag):
        A("L_nslow%s:" % tag)
        A("  s_add_u32 s65, s65, 64")
        A("  s_cmpk_ge_u32 s65, 256")
        A("  s_cbranch_scc1 L_nvec%s" % tag)
        A("  s_load_dwordx2 s[70:71], s[24:25], s65")
        A("  s_waitcnt lgkmcnt(0)")
        A("  s_min_u32 s37, s70, s71")
        A("  s_cmp_eq_u32 s37, 0")
        A("  s_cbranch_scc0 L_nok%s" % tag)
        A("  s_sleep 4")
        A("  s_branch L_nslow%s" % tag)
        A("L_nvec%s:" % tag)
        A("  s_and_b32 s37, s65, 63")
        A("  buffer_load_dwordx2 v[14:15], v11, s[24:27], s37 offen sc1")
        A("  s_sub_u32 s35, s35, 1")
        A("  s_waitcnt vmcnt(0)")
        A("  v_readfirstlane_b32 s70, v14")
        A("  v_readfirstlane_b32 s71, v15")
        A("  s_cmp_eq_u32 s35, 0")
        A("  s_cbranch_scc1 L_nok%s" % tag)
        A("  s_min_u32 s37, s70, s71")
        A("  s_cmp_eq_u32 s37, 0")
        A("  s_cbranch_scc1 L_nvec%s" % tag)
        A("  s_branch L_nok%s" % tag)
    A(HDR.rstrip('\n'))
    A("; @launch grid=(256,1,1) block=(512,1,1) lds=4096")
    A('.amdgcn_target "amdgcn-amd-amdhsa--gfx950"')
    A(".text")
    A(".globl %s_kernel" % NAME)
    A(".p2align 8")
    A(".type %s_kernel,@function" % NAME)
    A("%s_kernel:" % NAME)
    ST(0)
    A("  s_load_dwordx2 s[8:9], s[0:1], 8")
    A("  s_load_dwordx2 s[12:13], s[0:1], 16")
    A("  s_load_dwordx2 s[4:5], s[0:1], 0")
    A("  s_load_dwordx2 s[28:29], s[0:1], 48")
    A("  s_load_dwordx2 s[24:25], s[0:1], 40")
    A("  v_readfirstlane_b32 s3, v0")
    if scr:
        A("  s_lshr_b32 s33, s2, 3")
        A("  s_and_b32 s33, s33, 7")
        A("  s_xor_b32 s2, s2, s33")
    A("  v_and_b32 v0, 63, v0")
    A("  s_lshr_b32 s33, s2, 5")
    A("  s_and_b32 s32, s2, 7")
    A("  s_sub_u32 s33, s33, 1")
    A("  s_mov_b32 s31, 0x20000")
    A("  s_mov_b32 s30, %d" % WSZ)
    A("  s_lshr_b32 s3, s3, 6")
    A("  v_mov_b32 v11, 0")
    A("  s_cmp_ge_u32 s33, 7")
    A("  s_cbranch_scc1 L_helper")
    A("  s_mul_i32 s36, s32, 7")
    A("  s_lshl_b32 s37, s3, 2")
    A("  s_lshr_b32 s58, 0x%x, s37" % dset)
    A("  s_and_b32 s58, s58, 15")
    A("  s_add_u32 s58, s58, s33")
    A("  s_sub_u32 s57, s58, 7")
    A("  s_min_u32 s58, s58, s57")
    A("  s_add_u32 s58, s58, s36")
    A("  s_add_u32 s33, s33, s36")
    A("  s_bfe_u32 s34, s2, 0x20003")
    A("  v_lshrrev_b32 v2, 3, v0")
    A("  v_and_b32 v3, 7, v0")
    A("  s_cmp_ge_u32 s3, 4")
    A("  s_cbranch_scc1 L_ph2")
    A("  s_and_b32 s57, s3, 1")
    A("  s_lshl1_add_u32 s57, s34, s57")
    A("  s_mul_i32 s36, s57, %d" % (128 * 7168))
    A("  s_lshl_b32 s37, s58, 7")
    A("  s_add_u32 s41, s36, s37")
    A("  v_mul_u32_u24 v1, %d, v2" % (16 * 7168))
    A("  v_lshl_add_u32 v1, v3, 4, v1")
    A("  s_lshl_b32 s37, s57, 8")
    A("  v_lshlrev_b32 v4, 5, v2")
    A("  v_lshrrev_b32 v6, 4, v0")
    A("  v_lshl_add_u32 v6, v3, 2, v6")
    A("  s_lshl_b32 s36, s58, 13")
    A("  s_lshl_b32 s59, s57, 10")
    A("  s_add_u32 s36, s36, s59")
    A("  s_and_b32 s59, s3, 2")
    A("  s_lshl_b32 s59, s59, 8")
    A("  s_add_u32 s36, s36, s59")
    A("  s_add_u32 s36, s36, %d" % MB1)
    A("  v_lshlrev_b32 v5, 4, v6")
    A("  v_add_u32 v5, s36, v5")
    for k in range(4):
        A("  v_mov_b32 v%d, 0" % (12 + k))
    A("  s_movk_i32 s6, 2048")
    A("  s_mov_b32 s7, s31")
    A("  s_mov_b32 s10, 7340032")
    A("  s_mov_b32 s11, s31")
    A("  s_cmp_ge_u32 s3, 2")
    A("  s_waitcnt lgkmcnt(0)")
    A("  s_cselect_b32 s8, s12, s8")
    A("  s_cselect_b32 s9, s13, s9")
    ST(1)
    base = 32
    for i in range(16):
        reg = base + i * 4
        A("  buffer_load_dwordx4 v[%d:%d], v1, s[8:11], s41 offen%s" % (reg, reg + 3, pol))
        if i == 0:
            A("  buffer_store_dwordx4 v[12:15], v5, s[28:31], 0 offen")
            A("  buffer_load_dwordx4 v[24:27], v4, s[4:7], s37 offen")
            A("  buffer_load_dwordx4 v[28:31], v4, s[4:7], s37 offen offset:16")
        if i < 15:
            A("  s_addk_i32 s41, 7168")
    if bar0 == 1:
        A("  s_barrier")
    ex = 0
    for k in range(8):
        A("  v_mov_b32 v%d, 0" % (16 + k))
    A("  s_mov_b32 s38, 0x05040100")
    A("  s_mov_b32 s39, 0x07060302")
    A("  s_mov_b32 s35, 400000")
    A("  s_lshl_b32 s65, s32, 3")
    A("  s_movk_i32 s26, 256")
    A("  s_mov_b32 s27, s31")
    A("  s_mov_b32 s64, %d" % MBS)
    A("  s_getreg_b32 s41, hwreg(HW_REG_XCC_ID)")
    A("  s_and_b32 s41, s41, 15")
    A("  s_lshl_b32 s41, s41, 27")
    A("  s_lshl_b32 s37, s3, 7")
    A("  v_lshl_add_u32 v9, v6, 2, s37")
    A("  v_lshlrev_b32 v8, 1, v9")
    A("  s_lshl_b32 s36, s33, 13")
    A("  s_add_u32 s36, s36, %d" % MB1)
    A("  v_lshlrev_b32 v10, 4, v0")
    A("  v_add_u32 v10, s36, v10")
    A("  s_movk_i32 s40, 4096")
    A("  v_mov_b32 v2, 1")
    ST(2)
    for k in range(8):
        A("  s_waitcnt vmcnt(%d)" % (14 - 2 * k + ex))
        if bar0 >= 2 and k == bar0:
            A("  s_barrier")
        if k == nat:
            NONCE_ISSUE()
        r0 = base + 8 * k
        r1 = r0 + 4
        for c in range(4):
            A("  v_perm_b32 v6, v%d, v%d, s38" % (r1 + c, r0 + c))
            A("  v_perm_b32 v7, v%d, v%d, s39" % (r1 + c, r0 + c))
            A("  v_dot2c_f32_bf16 v%d, v%d, v6" % (16 + 2 * c, 24 + k))
            A("  v_dot2c_f32_bf16 v%d, v%d, v7" % (16 + 2 * c + 1, 24 + k))
    ST(3)
    A("  s_waitcnt lgkmcnt(0)")
    NONCE_CHECK("a")
    A("  v_or_b32 v15, s41, v15")
    REDUCE8(16)
    A("  s_mov_b32 exec_lo, 0x00ff00ff")
    A("  s_mov_b32 exec_hi, 0x00ff00ff")
    A("  buffer_store_dwordx4 v[12:15], v5, s[28:31], 0 offen%s" % spol)
    ST(5)
    if bar0 == 8:
        A("  s_barrier")
    A("  ds_write_b64 v8, v[12:13] offset:%d" % L_P)
    A("  ds_write_b32 v9, v5 offset:%d" % L_A)
    A("  s_mov_b64 exec, 1")
    A("  ds_add_rtn_u32 v2, v11, v2 offset:%d" % L_C)
    A("  s_mov_b64 exec, -1")
    A("  s_waitcnt lgkmcnt(0)")
    A("  v_readfirstlane_b32 s47, v2")
    A("  s_sub_u32 s46, s35, %d" % fastn)
    A("  v_lshlrev_b32 v9, 2, v0")
    A("  s_cmp_lg_u32 s47, %d" % poller)
    if stamps and poller != 3:
        A("  s_cbranch_scc1 L_stlast")
    else:
        A("  s_cbranch_scc1 L_end")
    ST(4)
    A("  s_movk_i32 s47, %d" % wd)
    A("L_wdog:")
    A("  s_sleep 8")
    A("  ds_read_b32 v2, v11 offset:%d" % L_D)
    A("  s_waitcnt lgkmcnt(0)")
    A("  v_cmp_eq_u32 vcc, 4, v2")
    if stamps:
        A("  s_cbranch_vccnz L_stw")
    else:
        A("  s_cbranch_vccnz L_end")
    A("  s_sub_u32 s47, s47, 1")
    A("  s_cmp_lg_u32 s47, 0")
    A("  s_cbranch_scc1 L_wdog")
    A("L_poll1:")
    def ld1(s, vreg, flav):
        A("  buffer_load_dwordx4 v[%d:%d], %s, s[28:31], %s offen offset:%d %s" % (32 + 4 * s, 35 + 4 * s, vreg, "0" if s < 4 else "s40", (s % 4) * 1024, flav))
    for s in range(8):
        ld1(s, "v10", "sc1")
    A("L_poll1chk:")
    A("  s_waitcnt vmcnt(0)")
    for s in range(8):
        A("  v_cmp_ne_u64 s[%d:%d], v[%d:%d], v[14:15]" % (48 + 2 * s, 49 + 2 * s, 34 + 4 * s, 35 + 4 * s))
    for s in range(0, 8, 2):
        A("  v_add_f32 v%d, v%d, v%d" % (16 + s, 32 + 4 * s, 36 + 4 * s))
        A("  v_add_f32 v%d, v%d, v%d" % (17 + s, 33 + 4 * s, 37 + 4 * s))
    A("  s_or_b64 s[42:43], s[48:49], s[50:51]")
    A("  v_add_f32 v16, v16, v18")
    A("  s_or_b64 s[44:45], s[52:53], s[54:55]")
    A("  v_add_f32 v17, v17, v19")
    A("  s_or_b64 s[66:67], s[56:57], s[58:59]")
    A("  v_add_f32 v20, v20, v22")
    A("  s_or_b64 s[68:69], s[60:61], s[62:63]")
    A("  v_add_f32 v21, v21, v23")
    A("  s_or_b64 s[42:43], s[42:43], s[44:45]")
    A("  v_add_f32 v16, v16, v20")
    A("  s_or_b64 s[66:67], s[66:67], s[68:69]")
    A("  v_add_f32 v17, v17, v21")
    A("  v_cvt_pk_bf16_f32 v18, v16, v17")
    A("  v_mov_b32 v19, v18")
    A("  s_or_b64 s[42:43], s[42:43], s[66:67]")
    A("  s_cbranch_scc1 L_repoll")
    A("L_got1:")
    A("  v_permlane32_swap_b32 v18, v19")
    A("  s_nop 1")
    A("  v_lshlrev_b32 v16, 16, v18")
    A("  v_and_b32 v17, 0xffff0000, v18")
    A("  v_lshlrev_b32 v20, 16, v19")
    A("  v_and_b32 v21, 0xffff0000, v19")
    A("  v_mul_f32 v16, v16, v20")
    A("  v_mul_f32 v17, v17, v21")
    A("  v_cvt_pk_bf16_f32 v16, v16, v17")
    A("  s_cmp_eq_u32 s34, 0xff")
    A("  s_cbranch_scc0 L_fbh")
    A("  v_mov_b32 v12, v16")
    A("  v_mov_b32_dpp v13, v16 quad_perm:[1,0,3,2] row_mask:0xf bank_mask:0xf")
    A("  s_cbranch_execz L_hhwarm")
    A("  s_mov_b32 exec_lo, 0x55555555")
    A("  s_mov_b32 exec_hi, 0")
    A("  buffer_store_dwordx4 v[12:15], v5, s[28:31], 0 offen")
    if stamps:
        ST(7)
        A("  s_cmp_lg_u32 s3, 3")
        A("  s_cbranch_scc1 L_end")
        STOUT([7])
    A("  s_endpgm")
    A("L_fbh:")
    A("  ds_write_b32 v9, v16 offset:%d" % L_H)
    A("  v_mov_b32 v2, 1")
    A("  ds_write_b32 v11, v2 offset:%d" % L_F)
    if stamps:
        A("L_stw:")
        STOUT(range(0, 6))
    A("  s_endpgm")
    A("L_repoll:")
    A("  s_sleep %d" % hs)
    A("  s_sub_u32 s35, s35, 1")
    A("  s_cmp_le_u32 s35, s46")
    A("  s_cbranch_scc1 L_slowpoll")
    A("L_fastround:")
    for s in range(8):
        A("  s_mov_b64 exec, s[%d:%d]" % (48 + 2 * s, 49 + 2 * s))
        A("  s_cbranch_execz L_p1skip%d" % s)
        ld1(s, "v10", "sc1")
        A("L_p1skip%d:" % s)
    A("  s_mov_b64 exec, -1")
    A("  s_branch L_poll1chk")
    A("L_ph2:")
    A("  s_load_dwordx2 s[16:17], s[0:1], 24")
    for k in range(4):
        A("  v_mov_b32 v%d, 0" % (12 + k))
    A("  ds_write_b128 v11, v[12:15] offset:%d" % L_C)
    A("  s_mov_b32 s18, 7340032")
    A("  s_mov_b32 s19, s31")
    A("  s_mov_b32 s38, 0x05040100")
    A("  s_mov_b32 s39, 0x07060302")
    A("  s_mov_b32 s35, 400000")
    A("  s_lshl_b32 s65, s32, 3")
    A("  s_movk_i32 s26, 256")
    A("  s_mov_b32 s27, s31")
    A("  s_lshl_b32 s36, s33, 17")
    A("  s_lshl_b32 s37, s34, 9")
    A("  s_add_u32 s36, s36, s37")
    A("  s_and_b32 s64, s3, 3")
    A("  s_lshl_b32 s37, s64, 7")
    A("  s_add_u32 s41, s36, s37")
    A("  v_lshlrev_b32 v1, 14, v2")
    A("  v_lshl_add_u32 v1, v3, 4, v1")
    A("  v_lshlrev_b32 v6, 4, v2")
    A("  v_lshrrev_b32 v4, 1, v3")
    A("  v_mul_u32_u24 v4, 7168, v4")
    A("  v_and_b32 v5, 1, v3")
    A("  v_lshl_add_u32 v4, v5, 6, v4")
    A("  v_lshrrev_b32 v5, 4, v0")
    A("  v_lshl_add_u32 v4, v5, 4, v4")
    A("  s_lshl2_add_u32 s36, s34, s64")
    A("  s_mul_i32 s36, s36, %d" % (4 * 7168))
    A("  s_lshl_b32 s37, s33, 7")
    A("  s_add_u32 s36, s36, s37")
    A("  v_add_u32 v4, s36, v4")
    A("  s_lshl_b32 s37, s33, 8")
    A("  s_add_u32 s37, s37, %d" % MBH)
    A("  v_lshl_add_u32 v9, v2, 5, s37")
    A("  s_getreg_b32 s40, hwreg(HW_REG_XCC_ID)")
    A("  s_and_b32 s40, s40, 15")
    A("  s_lshl_b32 s40, s40, 27")
    A("  v_mov_b32 v10, 1")
    if warm:
        A("  s_mov_b64 exec, 0")
        A("  s_branch L_tail2")
        A("L_warm2:")
        A("  s_mov_b64 exec, -1")
    A("  s_waitcnt lgkmcnt(0)")
    wbase = 32
    for j in range(8):
        if j == wsplit:
            A("  s_barrier")
        reg = wbase + j * 4
        A("  buffer_load_dwordx4 v[%d:%d], v1, s[16:19], s41 offen offset:%d%s" % (reg, reg + 3, (j % 2) * 2048, pol))
        if j % 2 == 1 and j < 7:
            A("  s_addk_i32 s41, 4096")
    A("  buffer_load_dwordx4 v[24:27], v9, s[28:31], 0 offen sc1")
    A("  buffer_load_dwordx4 v[28:31], v9, s[28:31], 0 offen offset:16 sc1")
    ST(8)
    for k in range(8):
        A("  v_mov_b32 v%d, 0" % (16 + k))
    pbase = 64
    for j in range(4):
        A("  s_waitcnt vmcnt(%d)" % (8 - 2 * j))
        if j == 3:
            NONCE_ISSUE()
        r0 = wbase + 8 * j
        r1 = r0 + 4
        for c in range(4):
            A("  v_perm_b32 v%d, v%d, v%d, s38" % (pbase + 8 * j + 2 * c, r1 + c, r0 + c))
            A("  v_perm_b32 v%d, v%d, v%d, s39" % (pbase + 8 * j + 2 * c + 1, r1 + c, r0 + c))
    ST(9)
    A("  s_waitcnt lgkmcnt(0)")
    NONCE_CHECK("b")
    A("  s_mov_b32 s66, s70")
    A("  s_or_b32 s67, s71, s40")
    A("L_hchk2:")
    A("  s_waitcnt vmcnt(0)")
    A("  v_cmp_ne_u64 s[42:43], s[66:67], v[26:27]")
    A("  v_cmp_ne_u64 vcc, s[66:67], v[30:31]")
    A("  s_or_b64 s[42:43], s[42:43], vcc")
    A("  s_cbranch_scc1 L_hretry")
    A("L_tail2:")
    ST(6)
    hreg = [24, 25, 28, 29]
    for j in range(4):
        for c in range(8):
            A("  v_dot2c_f32_bf16 v%d, v%d, v%d" % (16 + c, hreg[j], pbase + 8 * j + c))
    A("  s_nop 0")
    REDUCE8(16)
    if warm:
        A("  s_cbranch_execz L_warm2")
    A("  s_mov_b32 exec_lo, 0x00ff00ff")
    A("  s_mov_b32 exec_hi, 0x00ff00ff")
    A("  buffer_store_dwordx4 v[12:15], v4, s[28:31], 0 offen sc1")
    A("  s_mov_b64 exec, 1")
    A("  ds_add_u32 v11, v10 offset:%d" % L_D)
    if stamps:
        ST(10)
        A("  s_waitcnt vmcnt(0)")
        ST(11)
        A("  s_cmp_lg_u32 s3, 7")
        A("  s_cbranch_scc1 L_end")
        STOUT([6, 8, 9, 10, 11])
    A("  s_endpgm")
    A("L_hretry:")
    A("  buffer_load_dwordx4 v[24:27], v9, s[28:31], 0 offen sc1")
    A("  buffer_load_dwordx4 v[28:31], v9, s[28:31], 0 offen offset:16 sc1")
    A("  ds_read_b32 v5, v11 offset:%d" % L_F)
    A("  s_sub_u32 s35, s35, 1")
    A("  s_cmp_eq_u32 s35, 0")
    A("  s_cbranch_scc1 L_tail2")
    A("  s_waitcnt lgkmcnt(0)")
    A("  v_cmp_eq_u32 vcc, 0, v5")
    A("  s_cbranch_vccnz L_hchk2")
    A("  s_waitcnt vmcnt(0)")
    A("  ds_read_b64 v[24:25], v6 offset:%d" % L_H)
    A("  ds_read_b64 v[28:29], v6 offset:%d" % (L_H + 8))
    A("  s_waitcnt lgkmcnt(0)")
    A("  s_branch L_tail2")
    A("L_helper:")
    A("  s_cmp_ge_u32 s2, 32")
    A("  s_cbranch_scc1 L_end")
    A("  s_cmp_ge_u32 s3, %d" % (3 if nohh else 5))
    A("  s_cbranch_scc1 L_end")
    A("  s_movk_i32 s26, 256")
    A("  s_mov_b32 s27, s31")
    A("  s_cmp_lt_u32 s3, 2")
    A("  s_cbranch_scc1 L_hred")
    A("  s_cmp_ge_u32 s3, 3")
    A("  s_cbranch_scc1 L_hh")
    A("  s_cmp_ge_u32 s2, 8")
    A("  s_cbranch_scc1 L_end")
    A("  s_memrealtime s[44:45]")
    A("  s_lshl_b32 s37, s2, 3")
    A("  v_lshl_add_u32 v16, v0, 6, s37")
    A("  s_mov_b64 exec, 15")
    A("  s_waitcnt lgkmcnt(0)")
    A("  s_or_b32 s44, s44, 1")
    A("  s_and_b32 s45, s45, 0x07ffffff")
    A("  s_bitset1_b32 s45, 31")
    A("  v_mov_b32 v14, s44")
    A("  v_mov_b32 v15, s45")
    if cas:
        A("  v_mov_b32 v18, v16")
        A("  v_mov_b32 v16, 0")
        A("  v_mov_b32 v17, 0")
        A("  buffer_atomic_cmpswap_x2 v[14:17], v18, s[24:27], 0 offen sc1")
    else:
        A("  buffer_store_dwordx2 v[14:15], v16, s[24:27], 0 offen sc1")
    if stamps:
        A("  s_waitcnt vmcnt(0)")
        ST(6)
        STOUT([6])
    A("  s_endpgm")
    A("L_hh:")
    A("  s_lshr_b32 s33, s2, 3")
    A("  s_lshl1_add_u32 s33, s33, s3")
    A("  s_sub_u32 s33, s33, 3")
    A("  s_cmp_ge_u32 s33, 7")
    A("  s_cbranch_scc1 L_end")
    A("  s_mul_i32 s36, s32, 7")
    A("  s_add_u32 s33, s33, s36")
    A("  s_movk_i32 s34, 0xff")
    A("  v_mov_b32 v4, 0")
    A("  s_lshl_b32 s36, s33, 13")
    A("  s_add_u32 s36, s36, %d" % MB1)
    A("  v_lshlrev_b32 v10, 4, v0")
    A("  v_add_u32 v10, s36, v10")
    A("  s_movk_i32 s40, 4096")
    A("  s_lshl_b32 s36, s33, 8")
    A("  s_add_u32 s36, s36, %d" % MBH)
    A("  v_and_b32 v5, 31, v0")
    A("  v_lshrrev_b32 v5, 1, v5")
    A("  v_lshl_add_u32 v5, v5, 4, s36")
    A("  s_getreg_b32 s41, hwreg(HW_REG_XCC_ID)")
    A("  s_and_b32 s41, s41, 15")
    A("  s_lshl_b32 s41, s41, 27")
    A("  s_lshl_b32 s65, s32, 3")
    A("  s_movk_i32 s35, %d" % hn)
    A("  s_mov_b32 s46, 0")
    for k in range(4):
        A("  v_mov_b32 v%d, 0" % (12 + k))
    A("  s_waitcnt lgkmcnt(0)")
    A("  buffer_store_dwordx4 v[12:15], v5, s[28:31], 0 offen")
    A("  s_mov_b64 exec, 0")
    A("  s_branch L_got1")
    A("L_hhwarm:")
    A("  s_mov_b64 exec, -1")
    A("L_hhn:")
    A("  s_sleep 32")
    A("  buffer_load_dwordx2 v[14:15], v11, s[24:27], s65 offen sc1")
    A("  s_sub_u32 s35, s35, 1")
    A("  s_cmp_eq_u32 s35, 0")
    A("  s_cbranch_scc1 L_end")
    A("  s_waitcnt vmcnt(0)")
    A("  v_min_u32 v6, v14, v15")
    A("  v_cmp_eq_u32 vcc, 0, v6")
    A("  s_cbranch_vccnz L_hhn")
    A("  v_or_b32 v15, s41, v15")
    A("  s_branch L_poll1")
    A("L_hred:")
    A("  s_load_dwordx2 s[20:21], s[0:1], 32")
    A("  s_movk_i32 s22, 2048")
    A("  s_mov_b32 s23, s31")
    A("  s_mov_b32 s35, 400000")
    A("  s_lshl1_add_u32 s32, s2, s3")
    A("  s_mul_i32 s33, s32, 7168")
    A("  v_lshlrev_b32 v1, 4, v0")
    A("  v_add_u32 v1, s33, v1")
    A("  s_movk_i32 s40, 4096")
    A("  v_and_b32 v3, 7, v0")
    A("  v_lshlrev_b32 v3, 2, v3")
    A("  v_lshrrev_b32 v4, 5, v0")
    A("  v_lshl_add_u32 v3, v4, 1, v3")
    A("  s_lshl_b32 s33, s32, 5")
    A("  v_add_u32 v3, s33, v3")
    A("  v_lshrrev_b32 v4, 3, v0")
    for i in range(7):
        A("  v_add_u32 v5, %d, v4" % (8 * i))
        A("  v_mul_u32_u24 v5, 37, v5")
        A("  v_lshrrev_b32 v5, 8, v5")
        A("  v_lshlrev_b32 v%d, 3, v5" % (64 + i))
    A("  s_mov_b32 s34, 0")
    if warm:
        for r in range(48, 62, 2):
            A("  s_mov_b64 s[%d:%d], 0" % (r, r + 1))
        A("  s_mov_b64 exec, 0")
        A("  s_branch L_hchk")
        A("L_hwarm:")
        A("  s_mov_b64 exec, -1")
        A("  s_mov_b32 s34, 1")
    A("  s_waitcnt lgkmcnt(0)")
    ST(1)
    A("L_hnonce:")
    A("  s_sleep 24")
    for i in range(7):
        A("  buffer_load_dwordx2 v[%d:%d], v%d, s[24:27], 0 offen sc1" % (50 + 2 * i, 51 + 2 * i, 64 + i))
    A("  s_sub_u32 s35, s35, 1")
    A("  s_cmp_eq_u32 s35, 0")
    A("  s_cbranch_scc1 L_end")
    A("  s_waitcnt vmcnt(0)")
    A("  v_min3_u32 v6, v50, v51, v52")
    for r in range(53, 63, 2):
        A("  v_min3_u32 v6, v6, v%d, v%d" % (r, r + 1))
    A("  v_min_u32 v6, v6, v63")
    A("  v_cmp_eq_u32 vcc, 0, v6")
    A("  s_cbranch_vccnz L_hnonce")
    ST(2)
    A("  s_mov_b32 exec_lo, 0x01010101")
    A("  s_mov_b32 exec_hi, 0x01010101")
    A("L_hwait:")
    A("  buffer_load_dwordx4 v[16:19], v1, s[28:31], 0 offen sc1")
    A("  s_sub_u32 s35, s35, 1")
    A("  s_cmp_eq_u32 s35, 0")
    A("  s_cbranch_scc1 L_end")
    A("  s_waitcnt vmcnt(0)")
    if trig == 0:
        A("  v_cmp_eq_u64 vcc, v[18:19], v[50:51]")
        A("  s_cbranch_vccnz L_hgo")
    elif trig == 1:
        A("  v_cmp_ne_u64 vcc, v[18:19], v[50:51]")
        A("  s_cbranch_vccz L_hgo")
    else:
        A("  v_cmp_eq_u64 vcc, v[18:19], v[50:51]")
        A("  s_bcnt1_i32_b64 s36, vcc")
        A("  s_cmp_ge_u32 s36, %d" % trig)
        A("  s_cbranch_scc1 L_hgo")
    A("  s_sleep %d" % asleep)
    A("  s_branch L_hwait")
    A("L_hgo:")
    A("  s_mov_b64 exec, -1")
    def ld2(i):
        A("  buffer_load_dwordx4 v[%d:%d], v1, s[28:31], %s offen offset:%d sc1" % (16 + 4 * i, 19 + 4 * i, "0" if i < 4 else "s40", (i % 4) * 1024))
    for i in range(7):
        ld2(i)
    A("L_hchk:")
    A("  s_waitcnt vmcnt(0)")
    for i in range(7):
        A("  v_cmp_ne_u64 s[%d:%d], v[%d:%d], v[%d:%d]" % (48 + 2 * i, 49 + 2 * i, 18 + 4 * i, 19 + 4 * i, 50 + 2 * i, 51 + 2 * i))
    A("  v_add_f32 v44, v16, v20")
    A("  v_add_f32 v45, v17, v21")
    A("  v_add_f32 v46, v24, v28")
    A("  v_add_f32 v47, v25, v29")
    A("  v_add_f32 v48, v32, v36")
    A("  v_add_f32 v49, v33, v37")
    A("  s_or_b64 s[42:43], s[48:49], s[50:51]")
    A("  v_add_f32 v44, v44, v40")
    A("  s_or_b64 s[44:45], s[52:53], s[54:55]")
    A("  v_add_f32 v45, v45, v41")
    A("  s_or_b64 s[46:47], s[56:57], s[58:59]")
    A("  v_add_f32 v46, v46, v48")
    A("  s_or_b64 s[42:43], s[42:43], s[60:61]")
    A("  v_add_f32 v47, v47, v49")
    A("  s_or_b64 s[44:45], s[44:45], s[46:47]")
    A("  v_add_f32 v44, v44, v46")
    A("  v_add_f32 v45, v45, v47")
    A("  s_or_b64 s[42:43], s[42:43], s[44:45]")
    A("  s_cbranch_scc1 L_hrepoll")
    A("L_hgot:")
    ST(3)
    A("  v_permlane32_swap_b32 v44, v45")
    A("  s_nop 1")
    A("  v_add_f32 v44, v44, v45")
    A("  s_nop 1")
    A("  v_add_f32_dpp v44, v44, v44 row_ror:8 row_mask:0xf bank_mask:0xf")
    A("  s_nop 1")
    A("  v_mov_b32 v45, v44")
    A("  s_nop 1")
    A("  v_permlane16_swap_b32 v44, v45")
    A("  s_nop 1")
    A("  v_add_f32 v44, v44, v45")
    A("  v_cvt_pk_bf16_f32 v44, v44, v44")
    if warm:
        A("  s_cbranch_execz L_hre2")
    A("  s_mov_b32 exec_lo, 0xff")
    A("  s_mov_b32 exec_hi, 0xff")
    A("  buffer_store_short v44, v3, s[20:23], 0 offen%s" % opol)
    if probe:
        A("  s_memrealtime s[44:45]")
        A("  v_readfirstlane_b32 s46, v50")
        A("  s_waitcnt lgkmcnt(0)")
        A("  s_sub_u32 s47, s44, s46")
        A("  s_mul_i32 s47, s47, %d" % probe)
        A("  s_min_u32 s47, s47, 20000")
        A("L_probe:")
        A("  s_memrealtime s[42:43]")
        A("  s_waitcnt lgkmcnt(0)")
        A("  s_sub_u32 s42, s42, s44")
        A("  s_cmp_lt_u32 s42, s47")
        A("  s_cbranch_scc1 L_probe")
    if stamps:
        ST(4)
        A("  s_waitcnt vmcnt(0)")
        ST(5)
        A("  s_cmp_lg_u32 s3, 0")
        A("  s_cbranch_scc1 L_end")
        STOUT(range(0, 6))
    A("L_end:")
    A("  s_endpgm")
    A("L_hrepoll:")
    if hsl:
        A("  s_sleep %d" % hsl)
    A("  s_sub_u32 s35, s35, 1")
    A("  s_cmp_eq_u32 s35, 0")
    A("  s_cbranch_scc1 L_hgot")
    A("L_hre2:")
    for i in range(7):
        A("  s_mov_b64 exec, s[%d:%d]" % (48 + 2 * i, 49 + 2 * i))
        A("  s_cbranch_execz L_hskip%d" % i)
        ld2(i)
        A("L_hskip%d:" % i)
    if warm:
        A("  s_cmp_eq_u32 s34, 0")
        A("  s_cbranch_scc1 L_hwarm")
    A("  s_mov_b64 exec, -1")
    A("  s_branch L_hchk")
    if stamps and poller != 3:
        A("L_stlast:")
        A("  s_cmp_lg_u32 s47, 3")
        A("  s_cbranch_scc1 L_end")
        STOUT([3, 5])
        A("  s_endpgm")
    A("L_slowpoll:")
    A("  s_cmp_eq_u32 s34, 0xff")
    A("  s_cbranch_scc1 L_end")
    A("  s_cmp_eq_u32 s35, 0")
    A("  s_cbranch_scc1 L_got1")
    A("  s_cmp_lg_u32 s35, s46")
    A("  s_cbranch_scc1 L_noslow")
    if poller != 3:
        A("L_waitall:")
        A("  ds_read_b32 v5, v11 offset:%d" % L_C)
        A("  s_waitcnt lgkmcnt(0)")
        A("  v_cmp_ne_u32 vcc, 4, v5")
        A("  s_cbranch_vccnz L_waitall")
    A("  v_lshlrev_b32 v8, 3, v0")
    A("  ds_read_b64 v[20:21], v8 offset:%d" % L_P)
    A("  ds_read_b64 v[24:25], v8 offset:%d" % (L_P + 512))
    A("  ds_read_b32 v5, v9 offset:%d" % L_A)
    A("  ds_read_b32 v6, v9 offset:%d" % (L_A + 256))
    A("  v_mov_b32 v22, s70")
    A("  v_mov_b32 v23, s71")
    A("  v_mov_b32 v26, s70")
    A("  v_mov_b32 v27, s71")
    A("  v_add_u32 v4, %d, v10" % MBS)
    A("  s_waitcnt lgkmcnt(0)")
    A("  buffer_store_dwordx4 v[20:23], v5, s[28:31], s64 offen sc1")
    A("  buffer_store_dwordx4 v[24:27], v6, s[28:31], s64 offen sc1")
    A("L_noslow:")
    A("  s_bitcmp1_b32 s35, 0")
    A("  s_cbranch_scc1 L_fastround")
    for s in range(8):
        A("  s_mov_b64 exec, s[%d:%d]" % (48 + 2 * s, 49 + 2 * s))
        A("  s_cbranch_execz L_p1sk%d" % s)
        ld1(s, "v4", "sc1")
        A("  s_waitcnt vmcnt(0)")
        A("  v_xor_b32 v%d, s41, v%d" % (35 + 4 * s, 35 + 4 * s))
        A("L_p1sk%d:" % s)
    A("  s_mov_b64 exec, -1")
    A("  s_branch L_poll1chk")
    NONCE_SLOW("a")
    NONCE_SLOW("b")
    A('.section .rodata,"a"')
    A(".p2align 6")
    A(".amdhsa_kernel %s_kernel" % NAME)
    A("  .amdhsa_next_free_vgpr 96")
    A("  .amdhsa_next_free_sgpr 100")
    A("  .amdhsa_accum_offset 96")
    A("  .amdhsa_group_segment_fixed_size 0")
    A("  .amdhsa_kernarg_size 56")
    A("  .amdhsa_user_sgpr_count 2")
    A("  .amdhsa_user_sgpr_kernarg_segment_ptr 1")
    A("  .amdhsa_system_sgpr_workgroup_id_x 1")
    A("  .amdhsa_float_denorm_mode_32 3")
    A(".end_amdhsa_kernel")
    return "\n".join(o) + "\n"

if __name__ == "__main__":
    out = sys.argv[1]
    kw = {}
    for a in sys.argv[2:]:
        k, v = a.split("=")
        kw[k] = int(v) if v.isdigit() else (int(v, 16) if v.startswith('0x') else v)
    open(out, "w").write(gen(**kw))
```

```python
import sys
NAME = "standalone__glu_gated_bilinear__decode"
HDR = open('cdna_kernels/%s.s.ref' % NAME).read().split('; Override launch')[0]
MB1 = 64 * 7168
MBS = 56 * 8192
MBH = MB1 + 2 * MBS
WSZ = MBH + 56 * 256
L_P = 0
L_A = 1024
L_H = 2048
L_C = 2304
L_D = 2308
L_F = 2312

def gen(stamps=0, pol="nt", bar0=8, fastn=32, pre=2, asleep=2, nat=6, scr=0, warm=1, probe=0, poller=3, dset=0x4352, spol="x", opol="x", wsplit=3, cas=1, wd=40, hs=0, hn=100, nohh=0, trig=0, hsl=0, hat=2):
    o = []
    A = o.append
    pol = "" if pol == "x" else " " + pol.replace("_", " ")
    spol = "" if spol == "x" else " " + spol.replace("_", " ")
    opol = "" if opol == "x" else " " + opol.replace("_", " ")
    SB = 72
    def ST(k):
        if stamps:
            A("  s_memrealtime s[%d:%d]" % (SB + 2 * k, SB + 1 + 2 * k))
    def STOUT(ks):
        if not stamps:
            return
        A("  s_waitcnt lgkmcnt(0)")
        A("  s_mov_b32 s30, 0x10000000")
        A("  s_mov_b64 exec, 1")
        A("  s_add_u32 s33, s2, 224")
        A("  s_and_b32 s33, s33, 255")
        A("  s_lshl_b32 s33, s33, 7")
        A("  s_add_u32 s33, s33, 0x8000000")
        A("  v_mov_b32 v5, s33")
        for k in ks:
            A("  v_mov_b32 v6, s%d" % (SB + 2 * k))
            A("  v_mov_b32 v7, s%d" % (SB + 1 + 2 * k))
            A("  buffer_store_dwordx2 v[6:7], v5, s[28:31], 0 offen offset:%d" % (8 * k))
            A("  s_nop 1")
    def REDUCE8(a):
        for k in range(4):
            A("  v_permlane32_swap_b32 v%d, v%d" % (a + k, a + 4 + k))
        A("  s_nop 0")
        for k in range(4):
            A("  v_add_f32 v%d, v%d, v%d" % (a + k, a + k, a + 4 + k))
        A("  s_nop 0")
        for k in range(2):
            A("  v_permlane16_swap_b32 v%d, v%d" % (a + k, a + 2 + k))
        A("  s_nop 0")
        for k in range(2):
            A("  v_add_f32 v%d, v%d, v%d" % (a + k, a + k, a + 2 + k))
        A("  s_nop 0")
        for k in range(2):
            A("  v_add_f32_dpp v%d, v%d, v%d row_ror:8 row_mask:0xf bank_mask:0xf" % (12 + k, a + k, a + k))
    def NONCE_ISSUE():
        A("  s_load_dwordx2 s[70:71], s[24:25], s65")
    def NONCE_CHECK(tag):
        A("  s_min_u32 s37, s70, s71")
        A("  s_cmp_eq_u32 s37, 0")
        A("  s_cbranch_scc1 L_nslow%s" % tag)
        A("L_nok%s:" % tag)
        A("  v_mov_b32 v14, s70")
        A("  v_mov_b32 v15, s71")
    def NONCE_SLOW(tag):
        A("L_nslow%s:" % tag)
        A("  s_add_u32 s65, s65, 64")
        A("  s_cmpk_ge_u32 s65, 256")
        A("  s_cbranch_scc1 L_nvec%s" % tag)
        A("  s_load_dwordx2 s[70:71], s[24:25], s65")
        A("  s_waitcnt lgkmcnt(0)")
        A("  s_min_u32 s37, s70, s71")
        A("  s_cmp_eq_u32 s37, 0")
        A("  s_cbranch_scc0 L_nok%s" % tag)
        A("  s_sleep 4")
        A("  s_branch L_nslow%s" % tag)
        A("L_nvec%s:" % tag)
        A("  s_and_b32 s37, s65, 63")
        A("  buffer_load_dwordx2 v[14:15], v11, s[24:27], s37 offen sc1")
        A("  s_sub_u32 s35, s35, 1")
        A("  s_waitcnt vmcnt(0)")
        A("  v_readfirstlane_b32 s70, v14")
        A("  v_readfirstlane_b32 s71, v15")
        A("  s_cmp_eq_u32 s35, 0")
        A("  s_cbranch_scc1 L_nok%s" % tag)
        A("  s_min_u32 s37, s70, s71")
        A("  s_cmp_eq_u32 s37, 0")
        A("  s_cbranch_scc1 L_nvec%s" % tag)
        A("  s_branch L_nok%s" % tag)
    A(HDR.rstrip('\n'))
    A("; @launch grid=(256,1,1) block=(512,1,1) lds=4096")
    A('.amdgcn_target "amdgcn-amd-amdhsa--gfx950"')
    A(".text")
    A(".globl %s_kernel" % NAME)
    A(".p2align 8")
    A(".type %s_kernel,@function" % NAME)
    A("%s_kernel:" % NAME)
    ST(0)
    A("  s_load_dwordx2 s[8:9], s[0:1], 8")
    A("  s_load_dwordx2 s[12:13], s[0:1], 16")
    A("  s_load_dwordx2 s[4:5], s[0:1], 0")
    A("  s_load_dwordx2 s[28:29], s[0:1], 48")
    A("  s_load_dwordx2 s[24:25], s[0:1], 40")
    A("  v_readfirstlane_b32 s3, v0")
    if scr:
        A("  s_lshr_b32 s33, s2, 3")
        A("  s_and_b32 s33, s33, 7")
        A("  s_xor_b32 s2, s2, s33")
    A("  v_and_b32 v0, 63, v0")
    A("  s_lshr_b32 s33, s2, 5")
    A("  s_and_b32 s32, s2, 7")
    A("  s_sub_u32 s33, s33, 1")
    A("  s_mov_b32 s31, 0x20000")
    A("  s_mov_b32 s30, %d" % WSZ)
    A("  s_lshr_b32 s3, s3, 6")
    A("  v_mov_b32 v11, 0")
    A("  s_cmp_ge_u32 s33, 7")
    A("  s_cbranch_scc1 L_helper")
    A("  s_mul_i32 s36, s32, 7")
    A("  s_lshl_b32 s37, s3, 2")
    A("  s_lshr_b32 s58, 0x%x, s37" % dset)
    A("  s_and_b32 s58, s58, 15")
    A("  s_add_u32 s58, s58, s33")
    A("  s_sub_u32 s57, s58, 7")
    A("  s_min_u32 s58, s58, s57")
    A("  s_add_u32 s58, s58, s36")
    A("  s_add_u32 s33, s33, s36")
    A("  s_bfe_u32 s34, s2, 0x20003")
    A("  v_lshrrev_b32 v2, 3, v0")
    A("  v_and_b32 v3, 7, v0")
    A("  s_cmp_ge_u32 s3, 4")
    A("  s_cbranch_scc1 L_ph2")
    A("  s_and_b32 s57, s3, 1")
    A("  s_lshl1_add_u32 s57, s34, s57")
    A("  s_mul_i32 s36, s57, %d" % (128 * 7168))
    A("  s_lshl_b32 s37, s58, 7")
    A("  s_add_u32 s41, s36, s37")
    A("  v_mul_u32_u24 v1, %d, v2" % (16 * 7168))
    A("  v_lshl_add_u32 v1, v3, 4, v1")
    A("  s_lshl_b32 s37, s57, 8")
    A("  v_lshlrev_b32 v4, 5, v2")
    A("  v_lshrrev_b32 v6, 4, v0")
    A("  v_lshl_add_u32 v6, v3, 2, v6")
    A("  s_lshl_b32 s36, s58, 13")
    A("  s_lshl_b32 s59, s57, 10")
    A("  s_add_u32 s36, s36, s59")
    A("  s_and_b32 s59, s3, 2")
    A("  s_lshl_b32 s59, s59, 8")
    A("  s_add_u32 s36, s36, s59")
    A("  s_add_u32 s36, s36, %d" % MB1)
    A("  v_lshlrev_b32 v5, 4, v6")
    A("  v_add_u32 v5, s36, v5")
    for k in range(4):
        A("  v_mov_b32 v%d, 0" % (12 + k))
    A("  s_movk_i32 s6, 2048")
    A("  s_mov_b32 s7, s31")
    A("  s_mov_b32 s10, 7340032")
    A("  s_mov_b32 s11, s31")
    A("  s_cmp_ge_u32 s3, 2")
    A("  s_waitcnt lgkmcnt(0)")
    A("  s_cselect_b32 s8, s12, s8")
    A("  s_cselect_b32 s9, s13, s9")
    ST(1)
    base = 32
    for i in range(16):
        reg = base + i * 4
        A("  buffer_load_dwordx4 v[%d:%d], v1, s[8:11], s41 offen%s" % (reg, reg + 3, pol))
        if i == 0:
            A("  buffer_store_dwordx4 v[12:15], v5, s[28:31], 0 offen")
            A("  buffer_load_dwordx4 v[24:27], v4, s[4:7], s37 offen")
            A("  buffer_load_dwordx4 v[28:31], v4, s[4:7], s37 offen offset:16")
        if i < 15:
            A("  s_addk_i32 s41, 7168")
    if bar0 == 1:
        A("  s_barrier")
    ex = 0
    for k in range(8):
        A("  v_mov_b32 v%d, 0" % (16 + k))
    A("  s_mov_b32 s38, 0x05040100")
    A("  s_mov_b32 s39, 0x07060302")
    A("  s_mov_b32 s35, 400000")
    A("  s_lshl_b32 s65, s32, 3")
    A("  s_movk_i32 s26, 256")
    A("  s_mov_b32 s27, s31")
    A("  s_mov_b32 s64, %d" % MBS)
    A("  s_getreg_b32 s41, hwreg(HW_REG_XCC_ID)")
    A("  s_and_b32 s41, s41, 15")
    A("  s_lshl_b32 s41, s41, 27")
    A("  s_lshl_b32 s37, s3, 7")
    A("  v_lshl_add_u32 v9, v6, 2, s37")
    A("  v_lshlrev_b32 v8, 1, v9")
    A("  s_lshl_b32 s36, s33, 13")
    A("  s_add_u32 s36, s36, %d" % MB1)
    A("  v_lshlrev_b32 v10, 4, v0")
    A("  v_add_u32 v10, s36, v10")
    A("  s_movk_i32 s40, 4096")
    A("  v_mov_b32 v2, 1")
    ST(2)
    for k in range(8):
        A("  s_waitcnt vmcnt(%d)" % (14 - 2 * k + ex))
        if bar0 >= 2 and k == bar0:
            A("  s_barrier")
        if k == nat:
            NONCE_ISSUE()
        r0 = base + 8 * k
        r1 = r0 + 4
        for c in range(4):
            A("  v_perm_b32 v6, v%d, v%d, s38" % (r1 + c, r0 + c))
            A("  v_perm_b32 v7, v%d, v%d, s39" % (r1 + c, r0 + c))
            A("  v_dot2c_f32_bf16 v%d, v%d, v6" % (16 + 2 * c, 24 + k))
            A("  v_dot2c_f32_bf16 v%d, v%d, v7" % (16 + 2 * c + 1, 24 + k))
    ST(3)
    A("  s_waitcnt lgkmcnt(0)")
    NONCE_CHECK("a")
    A("  v_or_b32 v15, s41, v15")
    REDUCE8(16)
    A("  s_mov_b32 exec_lo, 0x00ff00ff")
    A("  s_mov_b32 exec_hi, 0x00ff00ff")
    A("  buffer_store_dwordx4 v[12:15], v5, s[28:31], 0 offen%s" % spol)
    ST(5)
    if bar0 == 8:
        A("  s_barrier")
    A("  ds_write_b64 v8, v[12:13] offset:%d" % L_P)
    A("  ds_write_b32 v9, v5 offset:%d" % L_A)
    A("  s_mov_b64 exec, 1")
    A("  ds_add_rtn_u32 v2, v11, v2 offset:%d" % L_C)
    A("  s_mov_b64 exec, -1")
    A("  s_waitcnt lgkmcnt(0)")
    A("  v_readfirstlane_b32 s47, v2")
    A("  s_sub_u32 s46, s35, %d" % fastn)
    A("  v_lshlrev_b32 v9, 2, v0")
    A("  s_cmp_lg_u32 s47, %d" % poller)
    if stamps and poller != 3:
        A("  s_cbranch_scc1 L_stlast")
    else:
        A("  s_cbranch_scc1 L_end")
    ST(4)
    A("  s_movk_i32 s47, %d" % wd)
    A("L_wdog:")
    A("  s_sleep 8")
    A("  ds_read_b32 v2, v11 offset:%d" % L_D)
    A("  s_waitcnt lgkmcnt(0)")
    A("  v_cmp_eq_u32 vcc, 4, v2")
    if stamps:
        A("  s_cbranch_vccnz L_stw")
    else:
        A("  s_cbranch_vccnz L_end")
    A("  s_sub_u32 s47, s47, 1")
    A("  s_cmp_lg_u32 s47, 0")
    A("  s_cbranch_scc1 L_wdog")
    A("L_poll1:")
    def ld1(s, vreg, flav):
        A("  buffer_load_dwordx4 v[%d:%d], %s, s[28:31], %s offen offset:%d %s" % (32 + 4 * s, 35 + 4 * s, vreg, "0" if s < 4 else "s40", (s % 4) * 1024, flav))
    for s in range(8):
        ld1(s, "v10", "sc1")
    A("L_poll1chk:")
    A("  s_waitcnt vmcnt(0)")
    for s in range(8):
        A("  v_cmp_ne_u64 s[%d:%d], v[%d:%d], v[14:15]" % (48 + 2 * s, 49 + 2 * s, 34 + 4 * s, 35 + 4 * s))
    for s in range(0, 8, 2):
        A("  v_add_f32 v%d, v%d, v%d" % (16 + s, 32 + 4 * s, 36 + 4 * s))
        A("  v_add_f32 v%d, v%d, v%d" % (17 + s, 33 + 4 * s, 37 + 4 * s))
    A("  s_or_b64 s[42:43], s[48:49], s[50:51]")
    A("  v_add_f32 v16, v16, v18")
    A("  s_or_b64 s[44:45], s[52:53], s[54:55]")
    A("  v_add_f32 v17, v17, v19")
    A("  s_or_b64 s[66:67], s[56:57], s[58:59]")
    A("  v_add_f32 v20, v20, v22")
    A("  s_or_b64 s[68:69], s[60:61], s[62:63]")
    A("  v_add_f32 v21, v21, v23")
    A("  s_or_b64 s[42:43], s[42:43], s[44:45]")
    A("  v_add_f32 v16, v16, v20")
    A("  s_or_b64 s[66:67], s[66:67], s[68:69]")
    A("  v_add_f32 v17, v17, v21")
    A("  v_cvt_pk_bf16_f32 v18, v16, v17")
    A("  v_mov_b32 v19, v18")
    A("  s_or_b64 s[42:43], s[42:43], s[66:67]")
    A("  s_cbranch_scc1 L_repoll")
    A("L_got1:")
    A("  v_permlane32_swap_b32 v18, v19")
    A("  s_nop 1")
    A("  v_lshlrev_b32 v16, 16, v18")
    A("  v_and_b32 v17, 0xffff0000, v18")
    A("  v_lshlrev_b32 v20, 16, v19")
    A("  v_and_b32 v21, 0xffff0000, v19")
    A("  v_mul_f32 v16, v16, v20")
    A("  v_mul_f32 v17, v17, v21")
    A("  v_cvt_pk_bf16_f32 v16, v16, v17")
    A("  s_cmp_eq_u32 s34, 0xff")
    A("  s_cbranch_scc0 L_fbh")
    A("  v_mov_b32 v12, v16")
    A("  v_mov_b32_dpp v13, v16 quad_perm:[1,0,3,2] row_mask:0xf bank_mask:0xf")
    A("  s_cbranch_execz L_hhwarm")
    A("  s_mov_b32 exec_lo, 0x55555555")
    A("  s_mov_b32 exec_hi, 0")
    A("  buffer_store_dwordx4 v[12:15], v5, s[28:31], 0 offen")
    if stamps:
        ST(7)
        A("  s_cmp_lg_u32 s3, 3")
        A("  s_cbranch_scc1 L_end")
        STOUT([7])
    A("  s_endpgm")
    A("L_fbh:")
    A("  ds_write_b32 v9, v16 offset:%d" % L_H)
    A("  v_mov_b32 v2, 1")
    A("  ds_write_b32 v11, v2 offset:%d" % L_F)
    if stamps:
        A("L_stw:")
        STOUT(range(0, 6))
    A("  s_endpgm")
    A("L_repoll:")
    A("  s_sleep %d" % hs)
    A("  s_sub_u32 s35, s35, 1")
    A("  s_cmp_le_u32 s35, s46")
    A("  s_cbranch_scc1 L_slowpoll")
    A("L_fastround:")
    for s in range(8):
        A("  s_mov_b64 exec, s[%d:%d]" % (48 + 2 * s, 49 + 2 * s))
        A("  s_cbranch_execz L_p1skip%d" % s)
        ld1(s, "v10", "sc1")
        A("L_p1skip%d:" % s)
    A("  s_mov_b64 exec, -1")
    A("  s_branch L_poll1chk")
    A("L_ph2:")
    A("  s_load_dwordx2 s[16:17], s[0:1], 24")
    for k in range(4):
        A("  v_mov_b32 v%d, 0" % (12 + k))
    A("  ds_write_b128 v11, v[12:15] offset:%d" % L_C)
    A("  s_mov_b32 s18, 7340032")
    A("  s_mov_b32 s19, s31")
    A("  s_mov_b32 s38, 0x05040100")
    A("  s_mov_b32 s39, 0x07060302")
    A("  s_mov_b32 s35, 400000")
    A("  s_lshl_b32 s65, s32, 3")
    A("  s_movk_i32 s26, 256")
    A("  s_mov_b32 s27, s31")
    A("  s_lshl_b32 s36, s33, 17")
    A("  s_lshl_b32 s37, s34, 9")
    A("  s_add_u32 s36, s36, s37")
    A("  s_and_b32 s64, s3, 3")
    A("  s_lshl_b32 s37, s64, 7")
    A("  s_add_u32 s41, s36, s37")
    A("  v_lshlrev_b32 v1, 14, v2")
    A("  v_lshl_add_u32 v1, v3, 4, v1")
    A("  v_lshlrev_b32 v6, 4, v2")
    A("  v_lshrrev_b32 v4, 1, v3")
    A("  v_mul_u32_u24 v4, 7168, v4")
    A("  v_and_b32 v5, 1, v3")
    A("  v_lshl_add_u32 v4, v5, 6, v4")
    A("  v_lshrrev_b32 v5, 4, v0")
    A("  v_lshl_add_u32 v4, v5, 4, v4")
    A("  s_lshl2_add_u32 s36, s34, s64")
    A("  s_mul_i32 s36, s36, %d" % (4 * 7168))
    A("  s_lshl_b32 s37, s33, 7")
    A("  s_add_u32 s36, s36, s37")
    A("  v_add_u32 v4, s36, v4")
    A("  s_lshl_b32 s37, s33, 8")
    A("  s_add_u32 s37, s37, %d" % MBH)
    A("  v_lshl_add_u32 v9, v2, 5, s37")
    A("  s_getreg_b32 s40, hwreg(HW_REG_XCC_ID)")
    A("  s_and_b32 s40, s40, 15")
    A("  s_lshl_b32 s40, s40, 27")
    A("  v_mov_b32 v10, 1")
    if warm:
        A("  s_mov_b64 exec, 0")
        A("  s_branch L_tail2")
        A("L_warm2:")
        A("  s_mov_b64 exec, -1")
    A("  s_waitcnt lgkmcnt(0)")
    wbase = 32
    for j in range(8):
        if j == wsplit:
            A("  s_barrier")
        reg = wbase + j * 4
        A("  buffer_load_dwordx4 v[%d:%d], v1, s[16:19], s41 offen offset:%d%s" % (reg, reg + 3, (j % 2) * 2048, pol))
        if j % 2 == 1 and j < 7:
            A("  s_addk_i32 s41, 4096")
    hat = int(hat)
    def HLD():
        A("  buffer_load_dwordx4 v[24:27], v9, s[28:31], 0 offen sc1")
        A("  buffer_load_dwordx4 v[28:31], v9, s[28:31], 0 offen offset:16 sc1")
    if hat < 0:
        HLD()
    ST(8)
    for k in range(8):
        A("  v_mov_b32 v%d, 0" % (16 + k))
    pbase = 64
    for j in range(4):
        A("  s_waitcnt vmcnt(%d)" % ((8 if j > hat else 6) - 2 * j))
        if j == hat:
            HLD()
        if j == 3:
            NONCE_ISSUE()
        r0 = wbase + 8 * j
        r1 = r0 + 4
        for c in range(4):
            A("  v_perm_b32 v%d, v%d, v%d, s38" % (pbase + 8 * j + 2 * c, r1 + c, r0 + c))
            A("  v_perm_b32 v%d, v%d, v%d, s39" % (pbase + 8 * j + 2 * c + 1, r1 + c, r0 + c))
    ST(9)
    A("  s_waitcnt lgkmcnt(0)")
    NONCE_CHECK("b")
    A("  s_mov_b32 s66, s70")
    A("  s_or_b32 s67, s71, s40")
    A("L_hchk2:")
    A("  s_waitcnt vmcnt(0)")
    A("  v_cmp_ne_u64 s[42:43], s[66:67], v[26:27]")
    A("  v_cmp_ne_u64 vcc, s[66:67], v[30:31]")
    A("  s_or_b64 s[42:43], s[42:43], vcc")
    A("  s_cbranch_scc1 L_hretry")
    A("L_tail2:")
    ST(6)
    hreg = [24, 25, 28, 29]
    for j in range(4):
        for c in range(8):
            A("  v_dot2c_f32_bf16 v%d, v%d, v%d" % (16 + c, hreg[j], pbase + 8 * j + c))
    A("  s_nop 0")
    REDUCE8(16)
    if warm:
        A("  s_cbranch_execz L_warm2")
    A("  s_mov_b32 exec_lo, 0x00ff00ff")
    A("  s_mov_b32 exec_hi, 0x00ff00ff")
    A("  buffer_store_dwordx4 v[12:15], v4, s[28:31], 0 offen sc1")
    A("  s_mov_b64 exec, 1")
    A("  ds_add_u32 v11, v10 offset:%d" % L_D)
    if stamps:
        ST(10)
        A("  s_waitcnt vmcnt(0)")
        ST(11)
        A("  s_cmp_lg_u32 s3, 7")
        A("  s_cbranch_scc1 L_end")
        STOUT([6, 8, 9, 10, 11])
    A("  s_endpgm")
    A("L_hretry:")
    A("  buffer_load_dwordx4 v[24:27], v9, s[28:31], 0 offen sc1")
    A("  buffer_load_dwordx4 v[28:31], v9, s[28:31], 0 offen offset:16 sc1")
    A("  ds_read_b32 v5, v11 offset:%d" % L_F)
    A("  s_sub_u32 s35, s35, 1")
    A("  s_cmp_eq_u32 s35, 0")
    A("  s_cbranch_scc1 L_tail2")
    A("  s_waitcnt lgkmcnt(0)")
    A("  v_cmp_eq_u32 vcc, 0, v5")
    A("  s_cbranch_vccnz L_hchk2")
    A("  s_waitcnt vmcnt(0)")
    A("  ds_read_b64 v[24:25], v6 offset:%d" % L_H)
    A("  ds_read_b64 v[28:29], v6 offset:%d" % (L_H + 8))
    A("  s_waitcnt lgkmcnt(0)")
    A("  s_branch L_tail2")
    A("L_helper:")
    A("  s_cmp_ge_u32 s2, 32")
    A("  s_cbranch_scc1 L_end")
    A("  s_cmp_ge_u32 s3, %d" % (3 if nohh else 5))
    A("  s_cbranch_scc1 L_end")
    A("  s_movk_i32 s26, 256")
    A("  s_mov_b32 s27, s31")
    A("  s_cmp_lt_u32 s3, 2")
    A("  s_cbranch_scc1 L_hred")
    A("  s_cmp_ge_u32 s3, 3")
    A("  s_cbranch_scc1 L_hh")
    A("  s_cmp_ge_u32 s2, 8")
    A("  s_cbranch_scc1 L_end")
    A("  s_memrealtime s[44:45]")
    A("  s_lshl_b32 s37, s2, 3")
    A("  v_lshl_add_u32 v16, v0, 6, s37")
    A("  s_mov_b64 exec, 15")
    A("  s_waitcnt lgkmcnt(0)")
    A("  s_or_b32 s44, s44, 1")
    A("  s_and_b32 s45, s45, 0x07ffffff")
    A("  s_bitset1_b32 s45, 31")
    A("  v_mov_b32 v14, s44")
    A("  v_mov_b32 v15, s45")
    if cas:
        A("  v_mov_b32 v18, v16")
        A("  v_mov_b32 v16, 0")
        A("  v_mov_b32 v17, 0")
        A("  buffer_atomic_cmpswap_x2 v[14:17], v18, s[24:27], 0 offen sc1")
    else:
        A("  buffer_store_dwordx2 v[14:15], v16, s[24:27], 0 offen sc1")
    if stamps:
        A("  s_waitcnt vmcnt(0)")
        ST(6)
        STOUT([6])
    A("  s_endpgm")
    A("L_hh:")
    A("  s_lshr_b32 s33, s2, 3")
    A("  s_lshl1_add_u32 s33, s33, s3")
    A("  s_sub_u32 s33, s33, 3")
    A("  s_cmp_ge_u32 s33, 7")
    A("  s_cbranch_scc1 L_end")
    A("  s_mul_i32 s36, s32, 7")
    A("  s_add_u32 s33, s33, s36")
    A("  s_movk_i32 s34, 0xff")
    A("  v_mov_b32 v4, 0")
    A("  s_lshl_b32 s36, s33, 13")
    A("  s_add_u32 s36, s36, %d" % MB1)
    A("  v_lshlrev_b32 v10, 4, v0")
    A("  v_add_u32 v10, s36, v10")
    A("  s_movk_i32 s40, 4096")
    A("  s_lshl_b32 s36, s33, 8")
    A("  s_add_u32 s36, s36, %d" % MBH)
    A("  v_and_b32 v5, 31, v0")
    A("  v_lshrrev_b32 v5, 1, v5")
    A("  v_lshl_add_u32 v5, v5, 4, s36")
    A("  s_getreg_b32 s41, hwreg(HW_REG_XCC_ID)")
    A("  s_and_b32 s41, s41, 15")
    A("  s_lshl_b32 s41, s41, 27")
    A("  s_lshl_b32 s65, s32, 3")
    A("  s_movk_i32 s35, %d" % hn)
    A("  s_mov_b32 s46, 0")
    for k in range(4):
        A("  v_mov_b32 v%d, 0" % (12 + k))
    A("  s_waitcnt lgkmcnt(0)")
    A("  buffer_store_dwordx4 v[12:15], v5, s[28:31], 0 offen")
    A("  s_mov_b64 exec, 0")
    A("  s_branch L_got1")
    A("L_hhwarm:")
    A("  s_mov_b64 exec, -1")
    A("L_hhn:")
    A("  s_sleep 32")
    A("  buffer_load_dwordx2 v[14:15], v11, s[24:27], s65 offen sc1")
    A("  s_sub_u32 s35, s35, 1")
    A("  s_cmp_eq_u32 s35, 0")
    A("  s_cbranch_scc1 L_end")
    A("  s_waitcnt vmcnt(0)")
    A("  v_min_u32 v6, v14, v15")
    A("  v_cmp_eq_u32 vcc, 0, v6")
    A("  s_cbranch_vccnz L_hhn")
    A("  v_or_b32 v15, s41, v15")
    A("  s_branch L_poll1")
    A("L_hred:")
    A("  s_load_dwordx2 s[20:21], s[0:1], 32")
    A("  s_movk_i32 s22, 2048")
    A("  s_mov_b32 s23, s31")
    A("  s_mov_b32 s35, 400000")
    A("  s_lshl1_add_u32 s32, s2, s3")
    A("  s_mul_i32 s33, s32, 7168")
    A("  v_lshlrev_b32 v1, 4, v0")
    A("  v_add_u32 v1, s33, v1")
    A("  s_movk_i32 s40, 4096")
    A("  v_and_b32 v3, 7, v0")
    A("  v_lshlrev_b32 v3, 2, v3")
    A("  v_lshrrev_b32 v4, 5, v0")
    A("  v_lshl_add_u32 v3, v4, 1, v3")
    A("  s_lshl_b32 s33, s32, 5")
    A("  v_add_u32 v3, s33, v3")
    A("  v_lshrrev_b32 v4, 3, v0")
    for i in range(7):
        A("  v_add_u32 v5, %d, v4" % (8 * i))
        A("  v_mul_u32_u24 v5, 37, v5")
        A("  v_lshrrev_b32 v5, 8, v5")
        A("  v_lshlrev_b32 v%d, 3, v5" % (64 + i))
    A("  s_mov_b32 s34, 0")
    if warm:
        for r in range(48, 62, 2):
            A("  s_mov_b64 s[%d:%d], 0" % (r, r + 1))
        A("  s_mov_b64 exec, 0")
        A("  s_branch L_hchk")
        A("L_hwarm:")
        A("  s_mov_b64 exec, -1")
        A("  s_mov_b32 s34, 1")
    A("  s_waitcnt lgkmcnt(0)")
    ST(1)
    A("L_hnonce:")
    A("  s_sleep 24")
    for i in range(7):
        A("  buffer_load_dwordx2 v[%d:%d], v%d, s[24:27], 0 offen sc1" % (50 + 2 * i, 51 + 2 * i, 64 + i))
    A("  s_sub_u32 s35, s35, 1")
    A("  s_cmp_eq_u32 s35, 0")
    A("  s_cbranch_scc1 L_end")
    A("  s_waitcnt vmcnt(0)")
    A("  v_min3_u32 v6, v50, v51, v52")
    for r in range(53, 63, 2):
        A("  v_min3_u32 v6, v6, v%d, v%d" % (r, r + 1))
    A("  v_min_u32 v6, v6, v63")
    A("  v_cmp_eq_u32 vcc, 0, v6")
    A("  s_cbranch_vccnz L_hnonce")
    ST(2)
    A("  s_mov_b32 exec_lo, 0x01010101")
    A("  s_mov_b32 exec_hi, 0x01010101")
    A("L_hwait:")
    A("  buffer_load_dwordx4 v[16:19], v1, s[28:31], 0 offen sc1")
    A("  s_sub_u32 s35, s35, 1")
    A("  s_cmp_eq_u32 s35, 0")
    A("  s_cbranch_scc1 L_end")
    A("  s_waitcnt vmcnt(0)")
    if trig == 0:
        A("  v_cmp_eq_u64 vcc, v[18:19], v[50:51]")
        A("  s_cbranch_vccnz L_hgo")
    elif trig == 1:
        A("  v_cmp_ne_u64 vcc, v[18:19], v[50:51]")
        A("  s_cbranch_vccz L_hgo")
    else:
        A("  v_cmp_eq_u64 vcc, v[18:19], v[50:51]")
        A("  s_bcnt1_i32_b64 s36, vcc")
        A("  s_cmp_ge_u32 s36, %d" % trig)
        A("  s_cbranch_scc1 L_hgo")
    A("  s_sleep %d" % asleep)
    A("  s_branch L_hwait")
    A("L_hgo:")
    A("  s_mov_b64 exec, -1")
    def ld2(i):
        A("  buffer_load_dwordx4 v[%d:%d], v1, s[28:31], %s offen offset:%d sc1" % (16 + 4 * i, 19 + 4 * i, "0" if i < 4 else "s40", (i % 4) * 1024))
    for i in range(7):
        ld2(i)
    A("L_hchk:")
    A("  s_waitcnt vmcnt(0)")
    for i in range(7):
        A("  v_cmp_ne_u64 s[%d:%d], v[%d:%d], v[%d:%d]" % (48 + 2 * i, 49 + 2 * i, 18 + 4 * i, 19 + 4 * i, 50 + 2 * i, 51 + 2 * i))
    A("  v_add_f32 v44, v16, v20")
    A("  v_add_f32 v45, v17, v21")
    A("  v_add_f32 v46, v24, v28")
    A("  v_add_f32 v47, v25, v29")
    A("  v_add_f32 v48, v32, v36")
    A("  v_add_f32 v49, v33, v37")
    A("  s_or_b64 s[42:43], s[48:49], s[50:51]")
    A("  v_add_f32 v44, v44, v40")
    A("  s_or_b64 s[44:45], s[52:53], s[54:55]")
    A("  v_add_f32 v45, v45, v41")
    A("  s_or_b64 s[46:47], s[56:57], s[58:59]")
    A("  v_add_f32 v46, v46, v48")
    A("  s_or_b64 s[42:43], s[42:43], s[60:61]")
    A("  v_add_f32 v47, v47, v49")
    A("  s_or_b64 s[44:45], s[44:45], s[46:47]")
    A("  v_add_f32 v44, v44, v46")
    A("  v_add_f32 v45, v45, v47")
    A("  s_or_b64 s[42:43], s[42:43], s[44:45]")
    A("  s_cbranch_scc1 L_hrepoll")
    A("L_hgot:")
    ST(3)
    A("  v_permlane32_swap_b32 v44, v45")
    A("  s_nop 1")
    A("  v_add_f32 v44, v44, v45")
    A("  s_nop 1")
    A("  v_add_f32_dpp v44, v44, v44 row_ror:8 row_mask:0xf bank_mask:0xf")
    A("  s_nop 1")
    A("  v_mov_b32 v45, v44")
    A("  s_nop 1")
    A("  v_permlane16_swap_b32 v44, v45")
    A("  s_nop 1")
    A("  v_add_f32 v44, v44, v45")
    A("  v_cvt_pk_bf16_f32 v44, v44, v44")
    if warm:
        A("  s_cbranch_execz L_hre2")
    A("  s_mov_b32 exec_lo, 0xff")
    A("  s_mov_b32 exec_hi, 0xff")
    A("  buffer_store_short v44, v3, s[20:23], 0 offen%s" % opol)
    if probe:
        A("  s_memrealtime s[44:45]")
        A("  v_readfirstlane_b32 s46, v50")
        A("  s_waitcnt lgkmcnt(0)")
        A("  s_sub_u32 s47, s44, s46")
        A("  s_mul_i32 s47, s47, %d" % probe)
        A("  s_min_u32 s47, s47, 20000")
        A("L_probe:")
        A("  s_memrealtime s[42:43]")
        A("  s_waitcnt lgkmcnt(0)")
        A("  s_sub_u32 s42, s42, s44")
        A("  s_cmp_lt_u32 s42, s47")
        A("  s_cbranch_scc1 L_probe")
    if stamps:
        ST(4)
        A("  s_waitcnt vmcnt(0)")
        ST(5)
        A("  s_cmp_lg_u32 s3, 0")
        A("  s_cbranch_scc1 L_end")
        STOUT(range(0, 6))
    A("L_end:")
    A("  s_endpgm")
    A("L_hrepoll:")
    if hsl:
        A("  s_sleep %d" % hsl)
    A("  s_sub_u32 s35, s35, 1")
    A("  s_cmp_eq_u32 s35, 0")
    A("  s_cbranch_scc1 L_hgot")
    A("L_hre2:")
    for i in range(7):
        A("  s_mov_b64 exec, s[%d:%d]" % (48 + 2 * i, 49 + 2 * i))
        A("  s_cbranch_execz L_hskip%d" % i)
        ld2(i)
        A("L_hskip%d:" % i)
    if warm:
        A("  s_cmp_eq_u32 s34, 0")
        A("  s_cbranch_scc1 L_hwarm")
    A("  s_mov_b64 exec, -1")
    A("  s_branch L_hchk")
    if stamps and poller != 3:
        A("L_stlast:")
        A("  s_cmp_lg_u32 s47, 3")
        A("  s_cbranch_scc1 L_end")
        STOUT([3, 5])
        A("  s_endpgm")
    A("L_slowpoll:")
    A("  s_cmp_eq_u32 s34, 0xff")
    A("  s_cbranch_scc1 L_end")
    A("  s_cmp_eq_u32 s35, 0")
    A("  s_cbranch_scc1 L_got1")
    A("  s_cmp_lg_u32 s35, s46")
    A("  s_cbranch_scc1 L_noslow")
    if poller != 3:
        A("L_waitall:")
        A("  ds_read_b32 v5, v11 offset:%d" % L_C)
        A("  s_waitcnt lgkmcnt(0)")
        A("  v_cmp_ne_u32 vcc, 4, v5")
        A("  s_cbranch_vccnz L_waitall")
    A("  v_lshlrev_b32 v8, 3, v0")
    A("  ds_read_b64 v[20:21], v8 offset:%d" % L_P)
    A("  ds_read_b64 v[24:25], v8 offset:%d" % (L_P + 512))
    A("  ds_read_b32 v5, v9 offset:%d" % L_A)
    A("  ds_read_b32 v6, v9 offset:%d" % (L_A + 256))
    A("  v_mov_b32 v22, s70")
    A("  v_mov_b32 v23, s71")
    A("  v_mov_b32 v26, s70")
    A("  v_mov_b32 v27, s71")
    A("  v_add_u32 v4, %d, v10" % MBS)
    A("  s_waitcnt lgkmcnt(0)")
    A("  buffer_store_dwordx4 v[20:23], v5, s[28:31], s64 offen sc1")
    A("  buffer_store_dwordx4 v[24:27], v6, s[28:31], s64 offen sc1")
    A("L_noslow:")
    A("  s_bitcmp1_b32 s35, 0")
    A("  s_cbranch_scc1 L_fastround")
    for s in range(8):
        A("  s_mov_b64 exec, s[%d:%d]" % (48 + 2 * s, 49 + 2 * s))
        A("  s_cbranch_execz L_p1sk%d" % s)
        ld1(s, "v4", "sc1")
        A("  s_waitcnt vmcnt(0)")
        A("  v_xor_b32 v%d, s41, v%d" % (35 + 4 * s, 35 + 4 * s))
        A("L_p1sk%d:" % s)
    A("  s_mov_b64 exec, -1")
    A("  s_branch L_poll1chk")
    NONCE_SLOW("a")
    NONCE_SLOW("b")
    A('.section .rodata,"a"')
    A(".p2align 6")
    A(".amdhsa_kernel %s_kernel" % NAME)
    A("  .amdhsa_next_free_vgpr 96")
    A("  .amdhsa_next_free_sgpr 100")
    A("  .amdhsa_accum_offset 96")
    A("  .amdhsa_group_segment_fixed_size 0")
    A("  .amdhsa_kernarg_size 56")
    A("  .amdhsa_user_sgpr_count 2")
    A("  .amdhsa_user_sgpr_kernarg_segment_ptr 1")
    A("  .amdhsa_system_sgpr_workgroup_id_x 1")
    A("  .amdhsa_float_denorm_mode_32 3")
    A(".end_amdhsa_kernel")
    return "\n".join(o) + "\n"

if __name__ == "__main__":
    out = sys.argv[1]
    kw = {}
    for a in sys.argv[2:]:
        k, v = a.split("=")
        kw[k] = int(v) if v.isdigit() else (int(v, 16) if v.startswith('0x') else v)
    open(out, "w").write(gen(**kw))
```

```python
import sys
NAME = "standalone__glu_gated_bilinear__decode"
HDR = open('cdna_kernels/%s.s.ref' % NAME).read().split('; Override launch')[0]
MB1 = 64 * 7168
MBS = 56 * 8192
MBH = MB1 + 2 * MBS
WSZ = MBH + 56 * 256
L_P = 0
L_A = 1024
L_H = 2048
L_C = 2304
L_D = 2308
L_F = 2312

DOC = """
out = ((x Wg) * (x Wu)) Wd in ONE launch; every weight byte is read once, in whole 128-B lines.
WG 0..31   helpers : waves 0,1 final reducers (16 output columns each), wave 2 (WG<8) writes the
           launch tag of its class (WG id & 7) to the zeroed d_debug, waves 3,4 turn g/u partial
           sums of one 64-column tile into h.
WG 32..255 workers : waves 0..3 stream 128 rows x 64 columns of Wg or Wu and publish fp32 partial
           sums; waves 4..7 stream 64 rows x 256 columns of Wd and publish fp32 partial outputs.
Hand-offs are 16-B granules {payload, payload, tag64}; the tag is a clock value taken in this launch,
so nothing found in d_ws is ever accepted.  g/u partials and h first travel through the die's L2
(plain stores, tag also carries the producer's die id).  If that does not complete, the worker polls
by itself and finally re-publishes write-through (sc1), so any placement gives the same result.
"""

def gen(stamps=0, pol="nt", bar0=8, fastn=32, pre=2, asleep=2, nat=6, scr=0, warm=1, probe=0, poller=3, dset=0x4352, spol="x", opol="x", wsplit=3, cas=1, wd=40, hs=0, hn=100, nohh=0, trig=0, hsl=0, hat=2, hns=32):
    o = []
    A = o.append
    pol = "" if pol == "x" else " " + pol.replace("_", " ")
    spol = "" if spol == "x" else " " + spol.replace("_", " ")
    opol = "" if opol == "x" else " " + opol.replace("_", " ")
    SB = 72
    def ST(k):
        if stamps:
            A("  s_memrealtime s[%d:%d]" % (SB + 2 * k, SB + 1 + 2 * k))
    def STOUT(ks):
        if not stamps:
            return
        A("  s_waitcnt lgkmcnt(0)")
        A("  s_mov_b32 s30, 0x10000000")
        A("  s_mov_b64 exec, 1")
        A("  s_add_u32 s33, s2, 224")
        A("  s_and_b32 s33, s33, 255")
        A("  s_lshl_b32 s33, s33, 7")
        A("  s_add_u32 s33, s33, 0x8000000")
        A("  v_mov_b32 v5, s33")
        for k in ks:
            A("  v_mov_b32 v6, s%d" % (SB + 2 * k))
            A("  v_mov_b32 v7, s%d" % (SB + 1 + 2 * k))
            A("  buffer_store_dwordx2 v[6:7], v5, s[28:31], 0 offen offset:%d" % (8 * k))
            A("  s_nop 1")
    def REDUCE8(a):
        for k in range(4):
            A("  v_permlane32_swap_b32 v%d, v%d" % (a + k, a + 4 + k))
        A("  s_nop 0")
        for k in range(4):
            A("  v_add_f32 v%d, v%d, v%d" % (a + k, a + k, a + 4 + k))
        A("  s_nop 0")
        for k in range(2):
            A("  v_permlane16_swap_b32 v%d, v%d" % (a + k, a + 2 + k))
        A("  s_nop 0")
        for k in range(2):
            A("  v_add_f32 v%d, v%d, v%d" % (a + k, a + k, a + 2 + k))
        A("  s_nop 0")
        for k in range(2):
            A("  v_add_f32_dpp v%d, v%d, v%d row_ror:8 row_mask:0xf bank_mask:0xf" % (12 + k, a + k, a + k))
    def NONCE_ISSUE():
        A("  s_load_dwordx2 s[70:71], s[24:25], s65")
    def NONCE_CHECK(tag):
        A("  s_min_u32 s37, s70, s71")
        A("  s_cmp_eq_u32 s37, 0")
        A("  s_cbranch_scc1 L_nslow%s" % tag)
        A("L_nok%s:" % tag)
        A("  v_mov_b32 v14, s70")
        A("  v_mov_b32 v15, s71")
    def NONCE_SLOW(tag):
        A("L_nslow%s:" % tag)
        A("  s_add_u32 s65, s65, 64")
        A("  s_cmpk_ge_u32 s65, 256")
        A("  s_cbranch_scc1 L_nvec%s" % tag)
        A("  s_load_dwordx2 s[70:71], s[24:25], s65")
        A("  s_waitcnt lgkmcnt(0)")
        A("  s_min_u32 s37, s70, s71")
        A("  s_cmp_eq_u32 s37, 0")
        A("  s_cbranch_scc0 L_nok%s" % tag)
        A("  s_sleep 4")
        A("  s_branch L_nslow%s" % tag)
        A("L_nvec%s:" % tag)
        A("  s_and_b32 s37, s65, 63")
        A("  buffer_load_dwordx2 v[14:15], v11, s[24:27], s37 offen sc1")
        A("  s_sub_u32 s35, s35, 1")
        A("  s_waitcnt vmcnt(0)")
        A("  v_readfirstlane_b32 s70, v14")
        A("  v_readfirstlane_b32 s71, v15")
        A("  s_cmp_eq_u32 s35, 0")
        A("  s_cbranch_scc1 L_nok%s" % tag)
        A("  s_min_u32 s37, s70, s71")
        A("  s_cmp_eq_u32 s37, 0")
        A("  s_cbranch_scc1 L_nvec%s" % tag)
        A("  s_branch L_nok%s" % tag)
    A(HDR.rstrip('\n'))
    A("; @launch grid=(256,1,1) block=(512,1,1) lds=4096")
    for line in DOC.strip("\n").split("\n"):
        A((";  " + line).rstrip())
    A('.amdgcn_target "amdgcn-amd-amdhsa--gfx950"')
    A(".text")
    A(".globl %s_kernel" % NAME)
    A(".p2align 8")
    A(".type %s_kernel,@function" % NAME)
    A("%s_kernel:" % NAME)
    ST(0)
    A("  s_load_dwordx2 s[8:9], s[0:1], 8")
    A("  s_load_dwordx2 s[12:13], s[0:1], 16")
    A("  s_load_dwordx2 s[4:5], s[0:1], 0")
    A("  s_load_dwordx2 s[28:29], s[0:1], 48")
    A("  s_load_dwordx2 s[24:25], s[0:1], 40")
    A("  v_readfirstlane_b32 s3, v0")
    if scr:
        A("  s_lshr_b32 s33, s2, 3")
        A("  s_and_b32 s33, s33, 7")
        A("  s_xor_b32 s2, s2, s33")
    A("  v_and_b32 v0, 63, v0")
    A("  s_lshr_b32 s33, s2, 5")
    A("  s_and_b32 s32, s2, 7")
    A("  s_sub_u32 s33, s33, 1")
    A("  s_mov_b32 s31, 0x20000")
    A("  s_mov_b32 s30, %d" % WSZ)
    A("  s_lshr_b32 s3, s3, 6")
    A("  v_mov_b32 v11, 0")
    A("  s_cmp_ge_u32 s33, 7")
    A("  s_cbranch_scc1 L_helper")
    A("  s_mul_i32 s36, s32, 7")
    A("  s_lshl_b32 s37, s3, 2")
    A("  s_lshr_b32 s58, 0x%x, s37" % dset)
    A("  s_and_b32 s58, s58, 15")
    A("  s_add_u32 s58, s58, s33")
    A("  s_sub_u32 s57, s58, 7")
    A("  s_min_u32 s58, s58, s57")
    A("  s_add_u32 s58, s58, s36")
    A("  s_add_u32 s33, s33, s36")
    A("  s_bfe_u32 s34, s2, 0x20003")
    A("  v_lshrrev_b32 v2, 3, v0")
    A("  v_and_b32 v3, 7, v0")
    A("  s_cmp_ge_u32 s3, 4")
    A("  s_cbranch_scc1 L_ph2")
    A("  s_and_b32 s57, s3, 1")
    A("  s_lshl1_add_u32 s57, s34, s57")
    A("  s_mul_i32 s36, s57, %d" % (128 * 7168))
    A("  s_lshl_b32 s37, s58, 7")
    A("  s_add_u32 s41, s36, s37")
    A("  v_mul_u32_u24 v1, %d, v2" % (16 * 7168))
    A("  v_lshl_add_u32 v1, v3, 4, v1")
    A("  s_lshl_b32 s37, s57, 8")
    A("  v_lshlrev_b32 v4, 5, v2")
    A("  v_lshrrev_b32 v6, 4, v0")
    A("  v_lshl_add_u32 v6, v3, 2, v6")
    A("  s_lshl_b32 s36, s58, 13")
    A("  s_lshl_b32 s59, s57, 10")
    A("  s_add_u32 s36, s36, s59")
    A("  s_and_b32 s59, s3, 2")
    A("  s_lshl_b32 s59, s59, 8")
    A("  s_add_u32 s36, s36, s59")
    A("  s_add_u32 s36, s36, %d" % MB1)
    A("  v_lshlrev_b32 v5, 4, v6")
    A("  v_add_u32 v5, s36, v5")
    for k in range(4):
        A("  v_mov_b32 v%d, 0" % (12 + k))
    A("  s_movk_i32 s6, 2048")
    A("  s_mov_b32 s7, s31")
    A("  s_mov_b32 s10, 7340032")
    A("  s_mov_b32 s11, s31")
    A("  s_cmp_ge_u32 s3, 2")
    A("  s_waitcnt lgkmcnt(0)")
    A("  s_cselect_b32 s8, s12, s8")
    A("  s_cselect_b32 s9, s13, s9")
    ST(1)
    base = 32
    for i in range(16):
        reg = base + i * 4
        A("  buffer_load_dwordx4 v[%d:%d], v1, s[8:11], s41 offen%s" % (reg, reg + 3, pol))
        if i == 0:
            if pre == 2:
                A("  buffer_store_dwordx4 v[12:15], v5, s[28:31], 0 offen")
            A("  buffer_load_dwordx4 v[24:27], v4, s[4:7], s37 offen")
            A("  buffer_load_dwordx4 v[28:31], v4, s[4:7], s37 offen offset:16")
        if i < 15:
            A("  s_addk_i32 s41, 7168")
    if bar0 == 1:
        A("  s_barrier")
    ex = 0
    for k in range(8):
        A("  v_mov_b32 v%d, 0" % (16 + k))
    A("  s_mov_b32 s38, 0x05040100")
    A("  s_mov_b32 s39, 0x07060302")
    A("  s_mov_b32 s35, 400000")
    A("  s_lshl_b32 s65, s32, 3")
    A("  s_movk_i32 s26, 256")
    A("  s_mov_b32 s27, s31")
    A("  s_mov_b32 s64, %d" % MBS)
    A("  s_getreg_b32 s41, hwreg(HW_REG_XCC_ID)")
    A("  s_and_b32 s41, s41, 15")
    A("  s_lshl_b32 s41, s41, 27")
    A("  s_lshl_b32 s37, s3, 7")
    A("  v_lshl_add_u32 v9, v6, 2, s37")
    A("  v_lshlrev_b32 v8, 1, v9")
    A("  s_lshl_b32 s36, s33, 13")
    A("  s_add_u32 s36, s36, %d" % MB1)
    A("  v_lshlrev_b32 v10, 4, v0")
    A("  v_add_u32 v10, s36, v10")
    A("  s_movk_i32 s40, 4096")
    A("  v_mov_b32 v2, 1")
    ST(2)
    for k in range(8):
        A("  s_waitcnt vmcnt(%d)" % (14 - 2 * k + ex))
        if bar0 >= 2 and k == bar0:
            A("  s_barrier")
        if k == nat:
            NONCE_ISSUE()
        r0 = base + 8 * k
        r1 = r0 + 4
        for c in range(4):
            A("  v_perm_b32 v6, v%d, v%d, s38" % (r1 + c, r0 + c))
            A("  v_perm_b32 v7, v%d, v%d, s39" % (r1 + c, r0 + c))
            A("  v_dot2c_f32_bf16 v%d, v%d, v6" % (16 + 2 * c, 24 + k))
            A("  v_dot2c_f32_bf16 v%d, v%d, v7" % (16 + 2 * c + 1, 24 + k))
    ST(3)
    A("  s_waitcnt lgkmcnt(0)")
    NONCE_CHECK("a")
    A("  v_or_b32 v15, s41, v15")
    REDUCE8(16)
    A("  s_mov_b32 exec_lo, 0x00ff00ff")
    A("  s_mov_b32 exec_hi, 0x00ff00ff")
    A("  buffer_store_dwordx4 v[12:15], v5, s[28:31], 0 offen%s" % spol)
    ST(5)
    if bar0 == 8:
        A("  s_barrier")
    A("  ds_write_b64 v8, v[12:13] offset:%d" % L_P)
    A("  ds_write_b32 v9, v5 offset:%d" % L_A)
    A("  s_mov_b64 exec, 1")
    A("  ds_add_rtn_u32 v2, v11, v2 offset:%d" % L_C)
    A("  s_mov_b64 exec, -1")
    A("  s_waitcnt lgkmcnt(0)")
    A("  v_readfirstlane_b32 s47, v2")
    A("  s_sub_u32 s46, s35, %d" % fastn)
    A("  v_lshlrev_b32 v9, 2, v0")
    A("  s_cmp_lg_u32 s47, %d" % poller)
    if stamps and poller != 3:
        A("  s_cbranch_scc1 L_stlast")
    else:
        A("  s_cbranch_scc1 L_end")
    ST(4)
    A("  s_movk_i32 s47, %d" % wd)
    A("L_wdog:")
    A("  s_sleep 8")
    A("  ds_read_b32 v2, v11 offset:%d" % L_D)
    A("  s_waitcnt lgkmcnt(0)")
    A("  v_cmp_eq_u32 vcc, 4, v2")
    if stamps:
        A("  s_cbranch_vccnz L_stw")
    else:
        A("  s_cbranch_vccnz L_end")
    A("  s_sub_u32 s47, s47, 1")
    A("  s_cmp_lg_u32 s47, 0")
    A("  s_cbranch_scc1 L_wdog")
    A("L_poll1:")
    def ld1(s, vreg, flav):
        A("  buffer_load_dwordx4 v[%d:%d], %s, s[28:31], %s offen offset:%d %s" % (32 + 4 * s, 35 + 4 * s, vreg, "0" if s < 4 else "s40", (s % 4) * 1024, flav))
    for s in range(8):
        ld1(s, "v10", "sc1")
    A("L_poll1chk:")
    A("  s_waitcnt vmcnt(0)")
    for s in range(8):
        A("  v_cmp_ne_u64 s[%d:%d], v[%d:%d], v[14:15]" % (48 + 2 * s, 49 + 2 * s, 34 + 4 * s, 35 + 4 * s))
    for s in range(0, 8, 2):
        A("  v_add_f32 v%d, v%d, v%d" % (16 + s, 32 + 4 * s, 36 + 4 * s))
        A("  v_add_f32 v%d, v%d, v%d" % (17 + s, 33 + 4 * s, 37 + 4 * s))
    A("  s_or_b64 s[42:43], s[48:49], s[50:51]")
    A("  v_add_f32 v16, v16, v18")
    A("  s_or_b64 s[44:45], s[52:53], s[54:55]")
    A("  v_add_f32 v17, v17, v19")
    A("  s_or_b64 s[66:67], s[56:57], s[58:59]")
    A("  v_add_f32 v20, v20, v22")
    A("  s_or_b64 s[68:69], s[60:61], s[62:63]")
    A("  v_add_f32 v21, v21, v23")
    A("  s_or_b64 s[42:43], s[42:43], s[44:45]")
    A("  v_add_f32 v16, v16, v20")
    A("  s_or_b64 s[66:67], s[66:67], s[68:69]")
    A("  v_add_f32 v17, v17, v21")
    A("  v_cvt_pk_bf16_f32 v18, v16, v17")
    A("  v_mov_b32 v19, v18")
    A("  s_or_b64 s[42:43], s[42:43], s[66:67]")
    A("  s_cbranch_scc1 L_repoll")
    A("L_got1:")
    A("  v_permlane32_swap_b32 v18, v19")
    A("  s_nop 1")
    A("  v_lshlrev_b32 v16, 16, v18")
    A("  v_and_b32 v17, 0xffff0000, v18")
    A("  v_lshlrev_b32 v20, 16, v19")
    A("  v_and_b32 v21, 0xffff0000, v19")
    A("  v_mul_f32 v16, v16, v20")
    A("  v_mul_f32 v17, v17, v21")
    A("  v_cvt_pk_bf16_f32 v16, v16, v17")
    A("  s_cmp_eq_u32 s34, 0xff")
    A("  s_cbranch_scc0 L_fbh")
    A("  v_mov_b32 v12, v16")
    A("  v_mov_b32_dpp v13, v16 quad_perm:[1,0,3,2] row_mask:0xf bank_mask:0xf")
    if warm:
        A("  s_cbranch_execz L_hhwarm")
    A("  s_mov_b32 exec_lo, 0x55555555")
    A("  s_mov_b32 exec_hi, 0")
    A("  buffer_store_dwordx4 v[12:15], v5, s[28:31], 0 offen")
    if stamps:
        ST(7)
        A("  s_cmp_lg_u32 s3, 3")
        A("  s_cbranch_scc1 L_end")
        STOUT([7])
    A("  s_endpgm")
    A("L_fbh:")
    A("  ds_write_b32 v9, v16 offset:%d" % L_H)
    A("  v_mov_b32 v2, 1")
    A("  ds_write_b32 v11, v2 offset:%d" % L_F)
    if stamps:
        A("L_stw:")
        STOUT(range(0, 6))
    A("  s_endpgm")
    A("L_repoll:")
    if hs:
        A("  s_sleep %d" % hs)
    A("  s_sub_u32 s35, s35, 1")
    A("  s_cmp_le_u32 s35, s46")
    A("  s_cbranch_scc1 L_slowpoll")
    A("L_fastround:")
    for s in range(8):
        A("  s_mov_b64 exec, s[%d:%d]" % (48 + 2 * s, 49 + 2 * s))
        A("  s_cbranch_execz L_p1skip%d" % s)
        ld1(s, "v10", "sc1")
        A("L_p1skip%d:" % s)
    A("  s_mov_b64 exec, -1")
    A("  s_branch L_poll1chk")
    A("L_ph2:")
    A("  s_load_dwordx2 s[16:17], s[0:1], 24")
    for k in range(4):
        A("  v_mov_b32 v%d, 0" % (12 + k))
    A("  ds_write_b128 v11, v[12:15] offset:%d" % L_C)
    A("  s_mov_b32 s18, 7340032")
    A("  s_mov_b32 s19, s31")
    A("  s_mov_b32 s38, 0x05040100")
    A("  s_mov_b32 s39, 0x07060302")
    A("  s_mov_b32 s35, 400000")
    A("  s_lshl_b32 s65, s32, 3")
    A("  s_movk_i32 s26, 256")
    A("  s_mov_b32 s27, s31")
    A("  s_lshl_b32 s36, s33, 17")
    A("  s_lshl_b32 s37, s34, 9")
    A("  s_add_u32 s36, s36, s37")
    A("  s_and_b32 s64, s3, 3")
    A("  s_lshl_b32 s37, s64, 7")
    A("  s_add_u32 s41, s36, s37")
    A("  v_lshlrev_b32 v1, 14, v2")
    A("  v_lshl_add_u32 v1, v3, 4, v1")
    A("  v_lshlrev_b32 v6, 4, v2")
    A("  v_lshrrev_b32 v4, 1, v3")
    A("  v_mul_u32_u24 v4, 7168, v4")
    A("  v_and_b32 v5, 1, v3")
    A("  v_lshl_add_u32 v4, v5, 6, v4")
    A("  v_lshrrev_b32 v5, 4, v0")
    A("  v_lshl_add_u32 v4, v5, 4, v4")
    A("  s_lshl2_add_u32 s36, s34, s64")
    A("  s_mul_i32 s36, s36, %d" % (4 * 7168))
    A("  s_lshl_b32 s37, s33, 7")
    A("  s_add_u32 s36, s36, s37")
    A("  v_add_u32 v4, s36, v4")
    A("  s_lshl_b32 s37, s33, 8")
    A("  s_add_u32 s37, s37, %d" % MBH)
    A("  v_lshl_add_u32 v9, v2, 5, s37")
    A("  s_getreg_b32 s40, hwreg(HW_REG_XCC_ID)")
    A("  s_and_b32 s40, s40, 15")
    A("  s_lshl_b32 s40, s40, 27")
    A("  v_mov_b32 v10, 1")
    if warm:
        A("  s_mov_b64 exec, 0")
        A("  s_branch L_tail2")
        A("L_warm2:")
        A("  s_mov_b64 exec, -1")
    A("  s_waitcnt lgkmcnt(0)")
    wbase = 32
    for j in range(8):
        if j == wsplit:
            A("  s_barrier")
        reg = wbase + j * 4
        A("  buffer_load_dwordx4 v[%d:%d], v1, s[16:19], s41 offen offset:%d%s" % (reg, reg + 3, (j % 2) * 2048, pol))
        if j % 2 == 1 and j < 7:
            A("  s_addk_i32 s41, 4096")
    hat = int(hat)
    def HLD():
        A("  buffer_load_dwordx4 v[24:27], v9, s[28:31], 0 offen sc1")
        A("  buffer_load_dwordx4 v[28:31], v9, s[28:31], 0 offen offset:16 sc1")
    if hat < 0:
        HLD()
    ST(8)
    for k in range(8):
        A("  v_mov_b32 v%d, 0" % (16 + k))
    pbase = 64
    for j in range(4):
        A("  s_waitcnt vmcnt(%d)" % ((8 if j > hat else 6) - 2 * j))
        if j == hat:
            HLD()
        if j == 3:
            NONCE_ISSUE()
        r0 = wbase + 8 * j
        r1 = r0 + 4
        for c in range(4):
            A("  v_perm_b32 v%d, v%d, v%d, s38" % (pbase + 8 * j + 2 * c, r1 + c, r0 + c))
            A("  v_perm_b32 v%d, v%d, v%d, s39" % (pbase + 8 * j + 2 * c + 1, r1 + c, r0 + c))
    ST(9)
    A("  s_waitcnt lgkmcnt(0)")
    NONCE_CHECK("b")
    A("  s_mov_b32 s66, s70")
    A("  s_or_b32 s67, s71, s40")
    A("L_hchk2:")
    A("  s_waitcnt vmcnt(0)")
    A("  v_cmp_ne_u64 s[42:43], s[66:67], v[26:27]")
    A("  v_cmp_ne_u64 vcc, s[66:67], v[30:31]")
    A("  s_or_b64 s[42:43], s[42:43], vcc")
    A("  s_cbranch_scc1 L_hretry")
    A("L_tail2:")
    ST(6)
    hreg = [24, 25, 28, 29]
    for j in range(4):
        for c in range(8):
            A("  v_dot2c_f32_bf16 v%d, v%d, v%d" % (16 + c, hreg[j], pbase + 8 * j + c))
    A("  s_nop 0")
    REDUCE8(16)
    if warm:
        A("  s_cbranch_execz L_warm2")
    A("  s_mov_b32 exec_lo, 0x00ff00ff")
    A("  s_mov_b32 exec_hi, 0x00ff00ff")
    A("  buffer_store_dwordx4 v[12:15], v4, s[28:31], 0 offen sc1")
    A("  s_mov_b64 exec, 1")
    A("  ds_add_u32 v11, v10 offset:%d" % L_D)
    if stamps:
        ST(10)
        A("  s_waitcnt vmcnt(0)")
        ST(11)
        A("  s_cmp_lg_u32 s3, 7")
        A("  s_cbranch_scc1 L_end")
        STOUT([6, 8, 9, 10, 11])
    A("  s_endpgm")
    A("L_hretry:")
    A("  buffer_load_dwordx4 v[24:27], v9, s[28:31], 0 offen sc1")
    A("  buffer_load_dwordx4 v[28:31], v9, s[28:31], 0 offen offset:16 sc1")
    A("  ds_read_b32 v5, v11 offset:%d" % L_F)
    A("  s_sub_u32 s35, s35, 1")
    A("  s_cmp_eq_u32 s35, 0")
    A("  s_cbranch_scc1 L_tail2")
    A("  s_waitcnt lgkmcnt(0)")
    A("  v_cmp_eq_u32 vcc, 0, v5")
    A("  s_cbranch_vccnz L_hchk2")
    A("  s_waitcnt vmcnt(0)")
    A("  ds_read_b64 v[24:25], v6 offset:%d" % L_H)
    A("  ds_read_b64 v[28:29], v6 offset:%d" % (L_H + 8))
    A("  s_waitcnt lgkmcnt(0)")
    A("  s_branch L_tail2")
    A("L_helper:")
    A("  s_cmp_ge_u32 s2, 32")
    A("  s_cbranch_scc1 L_end")
    A("  s_cmp_ge_u32 s3, %d" % (3 if nohh else 5))
    A("  s_cbranch_scc1 L_end")
    A("  s_movk_i32 s26, 256")
    A("  s_mov_b32 s27, s31")
    A("  s_cmp_lt_u32 s3, 2")
    A("  s_cbranch_scc1 L_hred")
    A("  s_cmp_ge_u32 s3, 3")
    A("  s_cbranch_scc1 L_hh")
    A("  s_cmp_ge_u32 s2, 8")
    A("  s_cbranch_scc1 L_end")
    A("  s_memrealtime s[44:45]")
    A("  s_lshl_b32 s37, s2, 3")
    A("  v_lshl_add_u32 v16, v0, 6, s37")
    A("  s_mov_b64 exec, 15")
    A("  s_waitcnt lgkmcnt(0)")
    A("  s_or_b32 s44, s44, 1")
    A("  s_and_b32 s45, s45, 0x07ffffff")
    A("  s_bitset1_b32 s45, 31")
    A("  v_mov_b32 v14, s44")
    A("  v_mov_b32 v15, s45")
    if cas:
        A("  v_mov_b32 v18, v16")
        A("  v_mov_b32 v16, 0")
        A("  v_mov_b32 v17, 0")
        A("  buffer_atomic_cmpswap_x2 v[14:17], v18, s[24:27], 0 offen sc1")
    else:
        A("  buffer_store_dwordx2 v[14:15], v16, s[24:27], 0 offen sc1")
    if stamps:
        A("  s_waitcnt vmcnt(0)")
        ST(6)
        STOUT([6])
    A("  s_endpgm")
    A("L_hh:")
    A("  s_lshr_b32 s33, s2, 3")
    A("  s_lshl1_add_u32 s33, s33, s3")
    A("  s_sub_u32 s33, s33, 3")
    A("  s_cmp_ge_u32 s33, 7")
    A("  s_cbranch_scc1 L_end")
    A("  s_mul_i32 s36, s32, 7")
    A("  s_add_u32 s33, s33, s36")
    A("  s_movk_i32 s34, 0xff")
    A("  v_mov_b32 v4, 0")
    A("  s_lshl_b32 s36, s33, 13")
    A("  s_add_u32 s36, s36, %d" % MB1)
    A("  v_lshlrev_b32 v10, 4, v0")
    A("  v_add_u32 v10, s36, v10")
    A("  s_movk_i32 s40, 4096")
    A("  s_lshl_b32 s36, s33, 8")
    A("  s_add_u32 s36, s36, %d" % MBH)
    A("  v_and_b32 v5, 31, v0")
    A("  v_lshrrev_b32 v5, 1, v5")
    A("  v_lshl_add_u32 v5, v5, 4, s36")
    A("  s_getreg_b32 s41, hwreg(HW_REG_XCC_ID)")
    A("  s_and_b32 s41, s41, 15")
    A("  s_lshl_b32 s41, s41, 27")
    A("  s_lshl_b32 s65, s32, 3")
    A("  s_movk_i32 s35, %d" % hn)
    A("  s_mov_b32 s46, 0")
    for k in range(4):
        A("  v_mov_b32 v%d, 0" % (12 + k))
    A("  s_waitcnt lgkmcnt(0)")
    A("  buffer_store_dwordx4 v[12:15], v5, s[28:31], 0 offen")
    if warm:
        A("  s_mov_b64 exec, 0")
        A("  s_branch L_got1")
        A("L_hhwarm:")
        A("  s_mov_b64 exec, -1")
    A("L_hhn:")
    A("  s_sleep %d" % hns)
    A("  buffer_load_dwordx2 v[14:15], v11, s[24:27], s65 offen sc1")
    A("  s_sub_u32 s35, s35, 1")
    A("  s_cmp_eq_u32 s35, 0")
    A("  s_cbranch_scc1 L_end")
    A("  s_waitcnt vmcnt(0)")
    A("  v_min_u32 v6, v14, v15")
    A("  v_cmp_eq_u32 vcc, 0, v6")
    A("  s_cbranch_vccnz L_hhn")
    A("  v_or_b32 v15, s41, v15")
    A("  s_branch L_poll1")
    A("L_hred:")
    A("  s_load_dwordx2 s[20:21], s[0:1], 32")
    A("  s_movk_i32 s22, 2048")
    A("  s_mov_b32 s23, s31")
    A("  s_mov_b32 s35, 400000")
    A("  s_lshl1_add_u32 s32, s2, s3")
    A("  s_mul_i32 s33, s32, 7168")
    A("  v_lshlrev_b32 v1, 4, v0")
    A("  v_add_u32 v1, s33, v1")
    A("  s_movk_i32 s40, 4096")
    A("  v_and_b32 v3, 7, v0")
    A("  v_lshlrev_b32 v3, 2, v3")
    A("  v_lshrrev_b32 v4, 5, v0")
    A("  v_lshl_add_u32 v3, v4, 1, v3")
    A("  s_lshl_b32 s33, s32, 5")
    A("  v_add_u32 v3, s33, v3")
    A("  v_lshrrev_b32 v4, 3, v0")
    for i in range(7):
        A("  v_add_u32 v5, %d, v4" % (8 * i))
        A("  v_mul_u32_u24 v5, 37, v5")
        A("  v_lshrrev_b32 v5, 8, v5")
        A("  v_lshlrev_b32 v%d, 3, v5" % (64 + i))
    A("  s_mov_b32 s34, 0")
    if warm:
        for r in range(48, 62, 2):
            A("  s_mov_b64 s[%d:%d], 0" % (r, r + 1))
        A("  s_mov_b64 exec, 0")
        A("  s_branch L_hchk")
        A("L_hwarm:")
        A("  s_mov_b64 exec, -1")
        A("  s_mov_b32 s34, 1")
    A("  s_waitcnt lgkmcnt(0)")
    ST(1)
    A("L_hnonce:")
    A("  s_sleep 24")
    for i in range(7):
        A("  buffer_load_dwordx2 v[%d:%d], v%d, s[24:27], 0 offen sc1" % (50 + 2 * i, 51 + 2 * i, 64 + i))
    A("  s_sub_u32 s35, s35, 1")
    A("  s_cmp_eq_u32 s35, 0")
    A("  s_cbranch_scc1 L_end")
    A("  s_waitcnt vmcnt(0)")
    A("  v_min3_u32 v6, v50, v51, v52")
    for r in range(53, 63, 2):
        A("  v_min3_u32 v6, v6, v%d, v%d" % (r, r + 1))
    A("  v_min_u32 v6, v6, v63")
    A("  v_cmp_eq_u32 vcc, 0, v6")
    A("  s_cbranch_vccnz L_hnonce")
    ST(2)
    A("  s_mov_b32 exec_lo, 0x01010101")
    A("  s_mov_b32 exec_hi, 0x01010101")
    A("L_hwait:")
    A("  buffer_load_dwordx4 v[16:19], v1, s[28:31], 0 offen sc1")
    A("  s_sub_u32 s35, s35, 1")
    A("  s_cmp_eq_u32 s35, 0")
    A("  s_cbranch_scc1 L_end")
    A("  s_waitcnt vmcnt(0)")
    if trig == 0:
        A("  v_cmp_eq_u64 vcc, v[18:19], v[50:51]")
        A("  s_cbranch_vccnz L_hgo")
    elif trig == 1:
        A("  v_cmp_ne_u64 vcc, v[18:19], v[50:51]")
        A("  s_cbranch_vccz L_hgo")
    else:
        A("  v_cmp_eq_u64 vcc, v[18:19], v[50:51]")
        A("  s_bcnt1_i32_b64 s36, vcc")
        A("  s_cmp_ge_u32 s36, %d" % trig)
        A("  s_cbranch_scc1 L_hgo")
    A("  s_sleep %d" % asleep)
    A("  s_branch L_hwait")
    A("L_hgo:")
    A("  s_mov_b64 exec, -1")
    def ld2(i):
        A("  buffer_load_dwordx4 v[%d:%d], v1, s[28:31], %s offen offset:%d sc1" % (16 + 4 * i, 19 + 4 * i, "0" if i < 4 else "s40", (i % 4) * 1024))
    for i in range(7):
        ld2(i)
    A("L_hchk:")
    A("  s_waitcnt vmcnt(0)")
    for i in range(7):
        A("  v_cmp_ne_u64 s[%d:%d], v[%d:%d], v[%d:%d]" % (48 + 2 * i, 49 + 2 * i, 18 + 4 * i, 19 + 4 * i, 50 + 2 * i, 51 + 2 * i))
    A("  v_add_f32 v44, v16, v20")
    A("  v_add_f32 v45, v17, v21")
    A("  v_add_f32 v46, v24, v28")
    A("  v_add_f32 v47, v25, v29")
    A("  v_add_f32 v48, v32, v36")
    A("  v_add_f32 v49, v33, v37")
    A("  s_or_b64 s[42:43], s[48:49], s[50:51]")
    A("  v_add_f32 v44, v44, v40")
    A("  s_or_b64 s[44:45], s[52:53], s[54:55]")
    A("  v_add_f32 v45, v45, v41")
    A("  s_or_b64 s[46:47], s[56:57], s[58:59]")
    A("  v_add_f32 v46, v46, v48")
    A("  s_or_b64 s[42:43], s[42:43], s[60:61]")
    A("  v_add_f32 v47, v47, v49")
    A("  s_or_b64 s[44:45], s[44:45], s[46:47]")
    A("  v_add_f32 v44, v44, v46")
    A("  v_add_f32 v45, v45, v47")
    A("  s_or_b64 s[42:43], s[42:43], s[44:45]")
    A("  s_cbranch_scc1 L_hrepoll")
    A("L_hgot:")
    ST(3)
    A("  v_permlane32_swap_b32 v44, v45")
    A("  s_nop 1")
    A("  v_add_f32 v44, v44, v45")
    A("  s_nop 1")
    A("  v_add_f32_dpp v44, v44, v44 row_ror:8 row_mask:0xf bank_mask:0xf")
    A("  s_nop 1")
    A("  v_mov_b32 v45, v44")
    A("  s_nop 1")
    A("  v_permlane16_swap_b32 v44, v45")
    A("  s_nop 1")
    A("  v_add_f32 v44, v44, v45")
    A("  v_cvt_pk_bf16_f32 v44, v44, v44")
    if warm:
        A("  s_cbranch_execz L_hre2")
    A("  s_mov_b32 exec_lo, 0xff")
    A("  s_mov_b32 exec_hi, 0xff")
    A("  buffer_store_short v44, v3, s[20:23], 0 offen%s" % opol)
    if probe:
        A("  s_memrealtime s[44:45]")
        A("  v_readfirstlane_b32 s46, v50")
        A("  s_waitcnt lgkmcnt(0)")
        A("  s_sub_u32 s47, s44, s46")
        A("  s_mul_i32 s47, s47, %d" % probe)
        A("  s_min_u32 s47, s47, 20000")
        A("L_probe:")
        A("  s_memrealtime s[42:43]")
        A("  s_waitcnt lgkmcnt(0)")
        A("  s_sub_u32 s42, s42, s44")
        A("  s_cmp_lt_u32 s42, s47")
        A("  s_cbranch_scc1 L_probe")
    if stamps:
        ST(4)
        A("  s_waitcnt vmcnt(0)")
        ST(5)
        A("  s_cmp_lg_u32 s3, 0")
        A("  s_cbranch_scc1 L_end")
        STOUT(range(0, 6))
    A("L_end:")
    A("  s_endpgm")
    A("L_hrepoll:")
    if hsl:
        A("  s_sleep %d" % hsl)
    A("  s_sub_u32 s35, s35, 1")
    A("  s_cmp_eq_u32 s35, 0")
    A("  s_cbranch_scc1 L_hgot")
    A("L_hre2:")
    for i in range(7):
        A("  s_mov_b64 exec, s[%d:%d]" % (48 + 2 * i, 49 + 2 * i))
        A("  s_cbranch_execz L_hskip%d" % i)
        ld2(i)
        A("L_hskip%d:" % i)
    if warm:
        A("  s_cmp_eq_u32 s34, 0")
        A("  s_cbranch_scc1 L_hwarm")
    A("  s_mov_b64 exec, -1")
    A("  s_branch L_hchk")
    if stamps and poller != 3:
        A("L_stlast:")
        A("  s_cmp_lg_u32 s47, 3")
        A("  s_cbranch_scc1 L_end")
        STOUT([3, 5])
        A("  s_endpgm")
    A("L_slowpoll:")
    A("  s_cmp_eq_u32 s34, 0xff")
    A("  s_cbranch_scc1 L_end")
    A("  s_cmp_eq_u32 s35, 0")
    A("  s_cbranch_scc1 L_got1")
    A("  s_cmp_lg_u32 s35, s46")
    A("  s_cbranch_scc1 L_noslow")
    if poller != 3:
        A("L_waitall:")
        A("  ds_read_b32 v5, v11 offset:%d" % L_C)
        A("  s_waitcnt lgkmcnt(0)")
        A("  v_cmp_ne_u32 vcc, 4, v5")
        A("  s_cbranch_vccnz L_waitall")
    A("  v_lshlrev_b32 v8, 3, v0")
    A("  ds_read_b64 v[20:21], v8 offset:%d" % L_P)
    A("  ds_read_b64 v[24:25], v8 offset:%d" % (L_P + 512))
    A("  ds_read_b32 v5, v9 offset:%d" % L_A)
    A("  ds_read_b32 v6, v9 offset:%d" % (L_A + 256))
    A("  v_mov_b32 v22, s70")
    A("  v_mov_b32 v23, s71")
    A("  v_mov_b32 v26, s70")
    A("  v_mov_b32 v27, s71")
    A("  v_add_u32 v4, %d, v10" % MBS)
    A("  s_waitcnt lgkmcnt(0)")
    A("  buffer_store_dwordx4 v[20:23], v5, s[28:31], s64 offen sc1")
    A("  buffer_store_dwordx4 v[24:27], v6, s[28:31], s64 offen sc1")
    A("L_noslow:")
    A("  s_bitcmp1_b32 s35, 0")
    A("  s_cbranch_scc1 L_fastround")
    for s in range(8):
        A("  s_mov_b64 exec, s[%d:%d]" % (48 + 2 * s, 49 + 2 * s))
        A("  s_cbranch_execz L_p1sk%d" % s)
        ld1(s, "v4", "sc1")
        A("  s_waitcnt vmcnt(0)")
        A("  v_xor_b32 v%d, s41, v%d" % (35 + 4 * s, 35 + 4 * s))
        A("L_p1sk%d:" % s)
    A("  s_mov_b64 exec, -1")
    A("  s_branch L_poll1chk")
    NONCE_SLOW("a")
    NONCE_SLOW("b")
    A('.section .rodata,"a"')
    A(".p2align 6")
    A(".amdhsa_kernel %s_kernel" % NAME)
    A("  .amdhsa_next_free_vgpr 96")
    A("  .amdhsa_next_free_sgpr %d" % (100 if stamps else 72))
    A("  .amdhsa_accum_offset 96")
    A("  .amdhsa_group_segment_fixed_size 0")
    A("  .amdhsa_kernarg_size 56")
    A("  .amdhsa_user_sgpr_count 2")
    A("  .amdhsa_user_sgpr_kernarg_segment_ptr 1")
    A("  .amdhsa_system_sgpr_workgroup_id_x 1")
    A("  .amdhsa_float_denorm_mode_32 3")
    A(".end_amdhsa_kernel")
    return "\n".join(o) + "\n"

if __name__ == "__main__":
    out = sys.argv[1]
    kw = {}
    for a in sys.argv[2:]:
        k, v = a.split("=")
        kw[k] = int(v) if v.isdigit() else (int(v, 16) if v.startswith('0x') else v)
    open(out, "w").write(gen(**kw))
```

```python
import sys
NAME = "standalone__glu_gated_bilinear__decode"
HDR = open('cdna_kernels/%s.s.ref' % NAME).read().split('; Override launch')[0]
MB1 = 64 * 7168
MBH = MB1 + 56 * 8192
MBF = 56 * 256
WSZ = MBH + 2 * MBF

DOC = """
out = ((x Wg) * (x Wu)) Wd in ONE launch; every weight byte is read once, in whole 128-B lines.
Class of a workgroup = id & 7.
WG 0..31   helpers : wave 2 writes {clock, die id} to its slot of the zeroed d_debug; waves 3,4 turn the
           g/u partial sums of one 64-column tile into h; waves 0,1 reduce 16 output columns each.
WG 32..255 workers : waves 0..3 stream 128 rows x 64 columns of Wg or Wu and publish fp32 partial sums;
           waves 4..7 stream 64 rows x 64 columns of Wd and publish fp32 partial outputs.
Hand-offs are 16-B granules {payload, payload, tag64}; the tag is slot 0 of the producer's class, a clock
value taken in this launch, so nothing found in d_ws is ever accepted.  g/u partials use plain stores (and
h is read from its plain-stored copy) only when all four helpers of the class report the worker's own die,
so that the data meets in that die's L2; otherwise the write-through (sc1) forms are used.  Partial
outputs are always write-through.  Any placement gives the same result.
"""

def gen(stamps=0, pol="nt", asleep=2, nat=6, scr=0, warm=1, probe=0, dset=0x4352, wsplit=4, hat=2, hns=20, trig=1, pre=0):
    o = []
    A = o.append
    pol = "" if pol == "x" else " " + pol.replace("_", " ")
    SB = 78
    def ST(k):
        if stamps:
            A("  s_memrealtime s[%d:%d]" % (SB + 2 * k, SB + 1 + 2 * k))
    def STOUT(ks):
        if not stamps:
            return
        A("  s_waitcnt lgkmcnt(0)")
        A("  s_mov_b32 s30, 0x10000000")
        A("  s_mov_b64 exec, 1")
        A("  s_add_u32 s33, s2, 224")
        A("  s_and_b32 s33, s33, 255")
        A("  s_lshl_b32 s33, s33, 7")
        A("  s_add_u32 s33, s33, 0x8000000")
        A("  v_mov_b32 v5, s33")
        for k in ks:
            A("  v_mov_b32 v6, s%d" % (SB + 2 * k))
            A("  v_mov_b32 v7, s%d" % (SB + 1 + 2 * k))
            A("  buffer_store_dwordx2 v[6:7], v5, s[28:31], 0 offen offset:%d" % (8 * k))
            A("  s_nop 1")
    def REDUCE8(a):
        for k in range(4):
            A("  v_permlane32_swap_b32 v%d, v%d" % (a + k, a + 4 + k))
        A("  s_nop 0")
        for k in range(4):
            A("  v_add_f32 v%d, v%d, v%d" % (a + k, a + k, a + 4 + k))
        A("  s_nop 0")
        for k in range(2):
            A("  v_permlane16_swap_b32 v%d, v%d" % (a + k, a + 2 + k))
        A("  s_nop 0")
        for k in range(2):
            A("  v_add_f32 v%d, v%d, v%d" % (a + k, a + k, a + 2 + k))
        A("  s_nop 0")
        for k in range(2):
            A("  v_add_f32_dpp v%d, v%d, v%d row_ror:8 row_mask:0xf bank_mask:0xf" % (12 + k, a + k, a + k))
    def SLOT_ISSUE():
        A("  s_load_dwordx8 s[68:75], s[24:25], s65")
    def SLOT_CHECK(tag):
        A("L_sck%s:" % tag)
        A("  s_and_b32 s36, s69, s71")
        A("  s_and_b32 s37, s73, s75")
        A("  s_and_b32 s36, s36, s37")
        A("  s_lshr_b32 s36, s36, 31")
        A("  s_and_b32 s36, s36, s68")
        A("  s_cbranch_scc0 L_sslow%s" % tag)
        A("L_sok%s:" % tag)
        A("  v_mov_b32 v14, s68")
        A("  v_mov_b32 v15, s69")
        A("  s_xor_b32 s36, s69, s40")
        A("  s_xor_b32 s37, s71, s40")
        A("  s_or_b32 s47, s36, s37")
        A("  s_xor_b32 s36, s73, s40")
        A("  s_xor_b32 s37, s75, s40")
        A("  s_or_b32 s36, s36, s37")
        A("  s_or_b32 s47, s47, s36")
        A("  s_and_b32 s47, s47, 0x78000000")
    def SLOT_SLOW(tag):
        A("L_sslow%s:" % tag)
        A("  v_lshlrev_b32 v14, 2, v0")
        A("  buffer_load_dword v15, v14, s[24:27], s65 offen sc1")
        A("  s_sub_u32 s35, s35, 1")
        A("  s_waitcnt vmcnt(0)")
        for i in range(8):
            A("  v_readlane_b32 s%d, v15, %d" % (68 + i, i))
        A("  s_cmp_eq_u32 s35, 0")
        A("  s_cbranch_scc1 L_sok%s" % tag)
        A("  s_branch L_sck%s" % tag)
    def PUBLISH(vaddr, tag):
        A("  s_mov_b32 exec_lo, 0x00ff00ff")
        A("  s_mov_b32 exec_hi, 0x00ff00ff")
        A("  s_cmp_lg_u32 s47, 0")
        A("  s_cbranch_scc1 L_pfar%s" % tag)
        A("  buffer_store_dwordx4 v[12:15], %s, s[28:31], 0 offen" % vaddr)
        A("L_pdone%s:" % tag)
    def PUBLISH_FAR(vaddr, tag):
        A("L_pfar%s:" % tag)
        A("  buffer_store_dwordx4 v[12:15], %s, s[28:31], 0 offen sc1" % vaddr)
        A("  s_branch L_pdone%s" % tag)
    def XCC():
        A("  s_getreg_b32 s40, hwreg(HW_REG_XCC_ID)")
        A("  s_and_b32 s40, s40, 15")
        A("  s_lshl_b32 s40, s40, 27")
    A(HDR.rstrip('\n'))
    A("; @launch grid=(256,1,1) block=(512,1,1) lds=0")
    for line in DOC.strip("\n").split("\n"):
        A((";  " + line).rstrip())
    A('.amdgcn_target "amdgcn-amd-amdhsa--gfx950"')
    A(".text")
    A(".globl %s_kernel" % NAME)
    A(".p2align 8")
    A(".type %s_kernel,@function" % NAME)
    A("%s_kernel:" % NAME)
    ST(0)
    A("  s_load_dwordx2 s[8:9], s[0:1], 8")
    A("  s_load_dwordx2 s[12:13], s[0:1], 16")
    A("  s_load_dwordx2 s[4:5], s[0:1], 0")
    A("  s_load_dwordx2 s[28:29], s[0:1], 48")
    A("  s_load_dwordx2 s[24:25], s[0:1], 40")
    A("  v_readfirstlane_b32 s3, v0")
    if scr:
        A("  s_lshr_b32 s33, s2, 3")
        A("  s_and_b32 s33, s33, 7")
        A("  s_xor_b32 s2, s2, s33")
    A("  v_and_b32 v0, 63, v0")
    A("  s_lshr_b32 s33, s2, 5")
    A("  s_and_b32 s32, s2, 7")
    A("  s_sub_u32 s33, s33, 1")
    A("  s_mov_b32 s31, 0x20000")
    A("  s_mov_b32 s30, %d" % WSZ)
    A("  s_lshr_b32 s3, s3, 6")
    A("  s_cmp_ge_u32 s33, 7")
    A("  s_cbranch_scc1 L_helper")
    A("  s_bfe_u32 s34, s2, 0x20003")
    A("  v_lshrrev_b32 v2, 3, v0")
    A("  v_and_b32 v3, 7, v0")
    for k in range(4):
        A("  v_mov_b32 v%d, 0" % (12 + k))
    A("  s_cmp_ge_u32 s3, 4")
    A("  s_cbranch_scc1 L_ph2")
    A("  s_mul_i32 s36, s32, 7")
    A("  s_lshl_b32 s37, s3, 2")
    A("  s_lshr_b32 s58, 0x%x, s37" % dset)
    A("  s_and_b32 s58, s58, 15")
    A("  s_add_u32 s58, s58, s33")
    A("  s_sub_u32 s57, s58, 7")
    A("  s_min_u32 s58, s58, s57")
    A("  s_add_u32 s58, s58, s36")
    A("  s_and_b32 s57, s3, 1")
    A("  s_lshl1_add_u32 s57, s34, s57")
    A("  s_mul_i32 s36, s57, %d" % (128 * 7168))
    A("  s_lshl_b32 s37, s58, 7")
    A("  s_add_u32 s41, s36, s37")
    A("  v_mul_u32_u24 v1, %d, v2" % (16 * 7168))
    A("  v_lshl_add_u32 v1, v3, 4, v1")
    A("  s_lshl_b32 s37, s57, 8")
    A("  v_lshlrev_b32 v4, 5, v2")
    A("  v_lshrrev_b32 v6, 4, v0")
    A("  v_lshl_add_u32 v6, v3, 2, v6")
    A("  s_lshl_b32 s36, s58, 13")
    A("  s_lshl_b32 s59, s57, 10")
    A("  s_add_u32 s36, s36, s59")
    A("  s_and_b32 s59, s3, 2")
    A("  s_lshl_b32 s59, s59, 8")
    A("  s_add_u32 s36, s36, s59")
    A("  s_add_u32 s36, s36, %d" % MB1)
    A("  v_lshlrev_b32 v5, 4, v6")
    A("  v_add_u32 v5, s36, v5")
    A("  s_movk_i32 s6, 2048")
    A("  s_mov_b32 s7, s31")
    A("  s_mov_b32 s10, 7340032")
    A("  s_mov_b32 s11, s31")
    A("  s_cmp_ge_u32 s3, 2")
    A("  s_waitcnt lgkmcnt(0)")
    A("  s_cselect_b32 s8, s12, s8")
    A("  s_cselect_b32 s9, s13, s9")
    ST(1)
    base = 32
    for i in range(16):
        reg = base + i * 4
        A("  buffer_load_dwordx4 v[%d:%d], v1, s[8:11], s41 offen%s" % (reg, reg + 3, pol))
        if i == 0:
            if pre:
                A("  buffer_store_dwordx4 v[12:15], v5, s[28:31], 0 offen")
            A("  buffer_load_dwordx4 v[24:27], v4, s[4:7], s37 offen")
            A("  buffer_load_dwordx4 v[28:31], v4, s[4:7], s37 offen offset:16")
        if i < 15:
            A("  s_addk_i32 s41, 7168")
    for k in range(8):
        A("  v_mov_b32 v%d, 0" % (16 + k))
    A("  s_mov_b32 s38, 0x05040100")
    A("  s_mov_b32 s39, 0x07060302")
    A("  s_mov_b32 s35, 400000")
    A("  s_lshl_b32 s65, s32, 5")
    A("  s_movk_i32 s26, 256")
    A("  s_mov_b32 s27, s31")
    XCC()
    ST(2)
    for k in range(8):
        A("  s_waitcnt vmcnt(%d)" % (14 - 2 * k))
        if k == nat:
            SLOT_ISSUE()
        r0 = base + 8 * k
        r1 = r0 + 4
        for c in range(4):
            A("  v_perm_b32 v6, v%d, v%d, s38" % (r1 + c, r0 + c))
            A("  v_perm_b32 v7, v%d, v%d, s39" % (r1 + c, r0 + c))
            A("  v_dot2c_f32_bf16 v%d, v%d, v6" % (16 + 2 * c, 24 + k))
            A("  v_dot2c_f32_bf16 v%d, v%d, v7" % (16 + 2 * c + 1, 24 + k))
        if k == 6:
            A("  s_waitcnt lgkmcnt(0)")
            SLOT_CHECK("a")
    ST(3)
    A("  s_nop 1")
    REDUCE8(16)
    PUBLISH("v5", "a")
    ST(5)
    A("  s_barrier")
    if stamps:
        A("  s_cmp_lg_u32 s3, 3")
        A("  s_cbranch_scc1 L_end")
        STOUT([0, 1, 2, 3, 5])
    A("  s_endpgm")
    A("L_ph2:")
    A("  s_load_dwordx2 s[16:17], s[0:1], 24")
    A("  s_mov_b32 s18, 7340032")
    A("  s_mov_b32 s19, s31")
    A("  s_mov_b32 s38, 0x05040100")
    A("  s_mov_b32 s39, 0x07060302")
    A("  s_mov_b32 s35, 400000")
    A("  s_lshl_b32 s65, s32, 5")
    A("  s_movk_i32 s26, 256")
    A("  s_mov_b32 s27, s31")
    A("  s_mul_i32 s36, s32, 7")
    A("  s_add_u32 s33, s33, s36")
    A("  s_and_b32 s64, s3, 3")
    A("  s_lshl2_add_u32 s37, s34, s64")
    A("  s_lshl_b32 s36, s33, 17")
    A("  s_lshl_b32 s59, s37, 7")
    A("  s_add_u32 s41, s36, s59")
    A("  v_lshlrev_b32 v1, 14, v2")
    A("  v_lshl_add_u32 v1, v3, 4, v1")
    A("  v_lshrrev_b32 v4, 1, v3")
    A("  v_mul_u32_u24 v4, 7168, v4")
    A("  v_and_b32 v5, 1, v3")
    A("  v_lshl_add_u32 v4, v5, 6, v4")
    A("  v_lshrrev_b32 v5, 4, v0")
    A("  v_lshl_add_u32 v4, v5, 4, v4")
    A("  s_mul_i32 s36, s37, %d" % (4 * 7168))
    A("  s_lshl_b32 s37, s33, 7")
    A("  s_add_u32 s36, s36, s37")
    A("  v_add_u32 v4, s36, v4")
    A("  s_lshl_b32 s37, s33, 8")
    A("  s_add_u32 s37, s37, %d" % MBH)
    A("  v_lshl_add_u32 v9, v2, 5, s37")
    A("  v_mov_b32 v11, 0")
    XCC()
    if warm:
        A("  s_mov_b64 exec, 0")
        A("  s_branch L_tail2")
        A("L_warm2:")
        A("  s_mov_b64 exec, -1")
    A("  s_waitcnt lgkmcnt(0)")
    wbase = 32
    def HLD():
        A("  buffer_load_dwordx4 v[24:27], v9, s[28:31], s66 offen sc1")
        A("  buffer_load_dwordx4 v[28:31], v9, s[28:31], s66 offen offset:16 sc1")
    for j in range(8):
        if j == wsplit:
            A("  s_barrier")
        reg = wbase + j * 4
        A("  buffer_load_dwordx4 v[%d:%d], v1, s[16:19], s41 offen offset:%d%s" % (reg, reg + 3, (j % 2) * 2048, pol))
        if j % 2 == 1 and j < 7:
            A("  s_addk_i32 s41, 4096")
    SLOT_ISSUE()
    ST(8)
    for k in range(8):
        A("  v_mov_b32 v%d, 0" % (16 + k))
    A("  s_waitcnt lgkmcnt(0)")
    SLOT_CHECK("b")
    A("  s_cselect_b32 s66, %d, 0" % MBF)
    pbase = 64
    for j in range(4):
        A("  s_waitcnt vmcnt(%d)" % ((8 if j > hat else 6) - 2 * j))
        if j == hat:
            HLD()
        r0 = wbase + 8 * j
        r1 = r0 + 4
        for c in range(4):
            A("  v_perm_b32 v%d, v%d, v%d, s38" % (pbase + 8 * j + 2 * c, r1 + c, r0 + c))
            A("  v_perm_b32 v%d, v%d, v%d, s39" % (pbase + 8 * j + 2 * c + 1, r1 + c, r0 + c))
    ST(9)
    A("L_hchk2:")
    A("  s_waitcnt vmcnt(0)")
    A("  v_cmp_ne_u64 s[42:43], s[68:69], v[26:27]")
    A("  v_cmp_ne_u64 vcc, s[68:69], v[30:31]")
    A("  s_or_b64 s[42:43], s[42:43], vcc")
    A("  s_cbranch_scc1 L_hretry")
    A("L_tail2:")
    ST(6)
    hreg = [24, 25, 28, 29]
    for j in range(4):
        for c in range(8):
            A("  v_dot2c_f32_bf16 v%d, v%d, v%d" % (16 + c, hreg[j], pbase + 8 * j + c))
    A("  s_nop 0")
    REDUCE8(16)
    if warm:
        A("  s_cbranch_execz L_warm2")
    A("  s_mov_b32 exec_lo, 0x00ff00ff")
    A("  s_mov_b32 exec_hi, 0x00ff00ff")
    A("  buffer_store_dwordx4 v[12:15], v4, s[28:31], 0 offen sc1")
    if stamps:
        ST(10)
        A("  s_waitcnt vmcnt(0)")
        ST(11)
        A("  s_cmp_lg_u32 s3, 7")
        A("  s_cbranch_scc1 L_end")
        STOUT([6, 8, 9, 10, 11])
    A("  s_endpgm")
    A("L_hretry:")
    HLD()
    A("  s_sub_u32 s35, s35, 1")
    A("  s_cmp_eq_u32 s35, 0")
    A("  s_cbranch_scc0 L_hchk2")
    A("  s_branch L_tail2")
    A("L_helper:")
    A("  s_cmp_ge_u32 s2, 32")
    A("  s_cbranch_scc1 L_end")
    A("  s_cmp_ge_u32 s3, 5")
    A("  s_cbranch_scc1 L_end")
    A("  s_movk_i32 s26, 256")
    A("  s_mov_b32 s27, s31")
    A("  s_lshl_b32 s65, s32, 5")
    A("  s_lshr_b32 s33, s2, 3")
    A("  v_mov_b32 v11, 0")
    A("  s_cmp_lg_u32 s3, 2")
    A("  s_cbranch_scc1 L_hcons")
    A("  s_memrealtime s[44:45]")
    XCC()
    A("  s_lshl3_add_u32 s37, s33, s65")
    A("  v_mov_b32 v16, 0")
    A("  v_mov_b32 v17, 0")
    A("  s_mov_b64 exec, 1")
    A("  s_waitcnt lgkmcnt(0)")
    A("  s_or_b32 s44, s44, 1")
    A("  s_and_b32 s45, s45, 0x07ffffff")
    A("  s_or_b32 s45, s45, s40")
    A("  s_bitset1_b32 s45, 31")
    A("  v_mov_b32 v14, s44")
    A("  v_mov_b32 v15, s45")
    A("  buffer_atomic_cmpswap_x2 v[14:17], v11, s[24:27], s37 offen sc1")
    if stamps:
        A("  s_waitcnt vmcnt(0)")
        ST(6)
        STOUT([6])
    A("  s_endpgm")
    A("L_hcons:")
    A("  s_load_dwordx2 s[20:21], s[0:1], 32")
    A("  s_movk_i32 s22, 2048")
    A("  s_mov_b32 s23, s31")
    A("  s_mov_b32 s35, 400000")
    A("  s_movk_i32 s41, 4096")
    A("  v_lshlrev_b32 v10, 4, v0")
    A("  s_cmp_lt_u32 s3, 2")
    A("  s_cbranch_scc1 L_hred")
    A("  s_lshl1_add_u32 s33, s33, s3")
    A("  s_sub_u32 s33, s33, 3")
    A("  s_cmp_ge_u32 s33, 7")
    A("  s_cbranch_scc1 L_end")
    A("  s_mul_i32 s36, s32, 7")
    A("  s_add_u32 s33, s33, s36")
    A("  s_lshl_b32 s36, s33, 13")
    A("  s_add_u32 s36, s36, %d" % MB1)
    A("  v_add_u32 v10, s36, v10")
    A("  s_lshl_b32 s36, s33, 8")
    A("  s_add_u32 s36, s36, %d" % MBH)
    A("  v_and_b32 v5, 31, v0")
    A("  v_lshrrev_b32 v5, 1, v5")
    A("  v_lshl_add_u32 v5, v5, 4, s36")
    A("  s_movk_i32 s64, %d" % MBF)
    if warm:
        A("  s_mov_b64 exec, 0")
        A("  s_branch L_got1")
        A("L_hhwarm:")
        A("  s_mov_b64 exec, -1")
    A("  s_waitcnt lgkmcnt(0)")
    for k in range(4):
        A("  v_mov_b32 v%d, 0" % (12 + k))
    A("  buffer_store_dwordx4 v[12:15], v5, s[28:31], 0 offen")
    def TAGWAIT(lbl):
        A("%s:" % lbl)
        A("  s_sleep %d" % hns)
        A("  buffer_load_dwordx2 v[14:15], v11, s[24:27], s65 offen sc1")
        A("  s_sub_u32 s35, s35, 1")
        A("  s_cmp_eq_u32 s35, 0")
        A("  s_cbranch_scc1 L_end")
        A("  s_waitcnt vmcnt(0)")
        A("  v_min_u32 v6, v14, v15")
        A("  v_cmp_eq_u32 vcc, 0, v6")
        A("  s_cbranch_vccnz %s" % lbl)
    TAGWAIT("L_hhn")
    def ld(s):
        A("  buffer_load_dwordx4 v[%d:%d], v10, s[28:31], %s offen offset:%d sc1" % (32 + 4 * s, 35 + 4 * s, "0" if s < 4 else "s41", (s % 4) * 1024))
    for s in range(8):
        ld(s)
    A("L_poll1chk:")
    A("  s_waitcnt vmcnt(0)")
    for s in range(8):
        A("  v_cmp_ne_u64 s[%d:%d], v[%d:%d], v[14:15]" % (48 + 2 * s, 49 + 2 * s, 34 + 4 * s, 35 + 4 * s))
    for s in range(0, 8, 2):
        A("  v_add_f32 v%d, v%d, v%d" % (16 + s, 32 + 4 * s, 36 + 4 * s))
        A("  v_add_f32 v%d, v%d, v%d" % (17 + s, 33 + 4 * s, 37 + 4 * s))
    A("  s_or_b64 s[42:43], s[48:49], s[50:51]")
    A("  v_add_f32 v16, v16, v18")
    A("  s_or_b64 s[44:45], s[52:53], s[54:55]")
    A("  v_add_f32 v17, v17, v19")
    A("  s_or_b64 s[66:67], s[56:57], s[58:59]")
    A("  v_add_f32 v20, v20, v22")
    A("  s_or_b64 s[68:69], s[60:61], s[62:63]")
    A("  v_add_f32 v21, v21, v23")
    A("  s_or_b64 s[42:43], s[42:43], s[44:45]")
    A("  v_add_f32 v16, v16, v20")
    A("  s_or_b64 s[66:67], s[66:67], s[68:69]")
    A("  v_add_f32 v17, v17, v21")
    A("  v_cvt_pk_bf16_f32 v18, v16, v17")
    A("  v_mov_b32 v19, v18")
    A("  s_or_b64 s[42:43], s[42:43], s[66:67]")
    A("  s_cbranch_scc1 L_repoll")
    A("L_got1:")
    A("  v_permlane32_swap_b32 v18, v19")
    A("  s_nop 1")
    A("  v_lshlrev_b32 v16, 16, v18")
    A("  v_and_b32 v17, 0xffff0000, v18")
    A("  v_lshlrev_b32 v20, 16, v19")
    A("  v_and_b32 v21, 0xffff0000, v19")
    A("  v_mul_f32 v16, v16, v20")
    A("  v_mul_f32 v17, v17, v21")
    A("  v_cvt_pk_bf16_f32 v12, v16, v17")
    A("  s_nop 1")
    A("  v_mov_b32_dpp v13, v12 quad_perm:[1,0,3,2] row_mask:0xf bank_mask:0xf")
    if warm:
        A("  s_cbranch_execz L_hhwarm")
    A("  s_mov_b32 exec_lo, 0x55555555")
    A("  s_mov_b32 exec_hi, 0")
    A("  buffer_store_dwordx4 v[12:15], v5, s[28:31], 0 offen")
    A("  buffer_store_dwordx4 v[12:15], v5, s[28:31], s64 offen sc1")
    if stamps:
        ST(7)
        A("  s_cmp_lg_u32 s3, 3")
        A("  s_cbranch_scc1 L_end")
        STOUT([7])
    A("  s_endpgm")
    A("L_repoll:")
    A("  s_sub_u32 s35, s35, 1")
    A("  s_cmp_eq_u32 s35, 0")
    A("  s_cbranch_scc1 L_got1")
    for s in range(8):
        A("  s_mov_b64 exec, s[%d:%d]" % (48 + 2 * s, 49 + 2 * s))
        A("  s_cbranch_execz L_p1skip%d" % s)
        ld(s)
        A("L_p1skip%d:" % s)
    A("  s_mov_b64 exec, -1")
    A("  s_branch L_poll1chk")
    A("L_hred:")
    A("  s_lshl1_add_u32 s33, s2, s3")
    A("  s_mul_i32 s36, s33, 7168")
    A("  v_add_u32 v10, s36, v10")
    A("  v_and_b32 v3, 7, v0")
    A("  v_lshlrev_b32 v3, 2, v3")
    A("  v_lshrrev_b32 v4, 5, v0")
    A("  v_lshl_add_u32 v3, v4, 1, v3")
    A("  s_lshl_b32 s36, s33, 5")
    A("  v_add_u32 v3, s36, v3")
    A("  v_lshrrev_b32 v4, 3, v0")
    for i in range(7):
        A("  v_add_u32 v5, %d, v4" % (8 * i))
        A("  v_mul_u32_u24 v5, 37, v5")
        A("  v_lshrrev_b32 v5, 8, v5")
        A("  v_lshlrev_b32 v%d, 5, v5" % (80 + i))
    A("  s_mov_b32 s34, 0")
    if warm:
        for r in range(48, 62, 2):
            A("  s_mov_b64 s[%d:%d], 0" % (r, r + 1))
        A("  s_mov_b64 exec, 0")
        A("  s_branch L_hchk")
        A("L_hwarm:")
        A("  s_mov_b64 exec, -1")
        A("  s_mov_b32 s34, 1")
    A("  s_waitcnt lgkmcnt(0)")
    ST(1)
    A("L_hnonce:")
    A("  s_sleep %d" % hns)
    for i in range(7):
        A("  buffer_load_dwordx2 v[%d:%d], v%d, s[24:27], 0 offen sc1" % (64 + 2 * i, 65 + 2 * i, 80 + i))
    A("  s_sub_u32 s35, s35, 1")
    A("  s_cmp_eq_u32 s35, 0")
    A("  s_cbranch_scc1 L_end")
    A("  s_waitcnt vmcnt(0)")
    A("  v_min3_u32 v6, v64, v65, v66")
    for r in range(67, 77, 2):
        A("  v_min3_u32 v6, v6, v%d, v%d" % (r, r + 1))
    A("  v_min_u32 v6, v6, v77")
    A("  v_cmp_eq_u32 vcc, 0, v6")
    A("  s_cbranch_vccnz L_hnonce")
    ST(2)
    if trig:
        A("  s_mov_b32 exec_lo, 0x01010101")
        A("  s_mov_b32 exec_hi, 0x01010101")
        A("L_hwait:")
        A("  buffer_load_dwordx4 v[32:35], v10, s[28:31], 0 offen sc1")
        A("  s_sub_u32 s35, s35, 1")
        A("  s_cmp_eq_u32 s35, 0")
        A("  s_cbranch_scc1 L_end")
        A("  s_waitcnt vmcnt(0)")
        A("  v_cmp_eq_u64 vcc, v[34:35], v[64:65]")
        A("  s_cbranch_vccnz L_hgo")
        A("  s_sleep %d" % asleep)
        A("  s_branch L_hwait")
        A("L_hgo:")
        A("  s_mov_b64 exec, -1")
    for i in range(7):
        ld(i)
    A("L_hchk:")
    A("  s_waitcnt vmcnt(0)")
    for i in range(7):
        A("  v_cmp_ne_u64 s[%d:%d], v[%d:%d], v[%d:%d]" % (48 + 2 * i, 49 + 2 * i, 34 + 4 * i, 35 + 4 * i, 64 + 2 * i, 65 + 2 * i))
    A("  v_add_f32 v16, v32, v36")
    A("  v_add_f32 v17, v33, v37")
    A("  v_add_f32 v18, v40, v44")
    A("  v_add_f32 v19, v41, v45")
    A("  v_add_f32 v20, v48, v52")
    A("  v_add_f32 v21, v49, v53")
    A("  s_or_b64 s[42:43], s[48:49], s[50:51]")
    A("  v_add_f32 v16, v16, v56")
    A("  s_or_b64 s[44:45], s[52:53], s[54:55]")
    A("  v_add_f32 v17, v17, v57")
    A("  s_or_b64 s[46:47], s[56:57], s[58:59]")
    A("  v_add_f32 v18, v18, v20")
    A("  s_or_b64 s[42:43], s[42:43], s[60:61]")
    A("  v_add_f32 v19, v19, v21")
    A("  s_or_b64 s[44:45], s[44:45], s[46:47]")
    A("  v_add_f32 v16, v16, v18")
    A("  v_add_f32 v17, v17, v19")
    A("  s_or_b64 s[42:43], s[42:43], s[44:45]")
    A("  s_cbranch_scc1 L_hrepoll")
    A("L_hgot:")
    ST(3)
    A("  v_permlane32_swap_b32 v16, v17")
    A("  s_nop 1")
    A("  v_add_f32 v16, v16, v17")
    A("  s_nop 1")
    A("  v_add_f32_dpp v16, v16, v16 row_ror:8 row_mask:0xf bank_mask:0xf")
    A("  s_nop 1")
    A("  v_mov_b32 v17, v16")
    A("  s_nop 1")
    A("  v_permlane16_swap_b32 v16, v17")
    A("  s_nop 1")
    A("  v_add_f32 v16, v16, v17")
    A("  v_cvt_pk_bf16_f32 v16, v16, v16")
    if warm:
        A("  s_cbranch_execz L_hre2")
    A("  s_mov_b32 exec_lo, 0xff")
    A("  s_mov_b32 exec_hi, 0xff")
    A("  buffer_store_short v16, v3, s[20:23], 0 offen")
    if probe:
        A("  s_mov_b64 exec, -1")
        A("  buffer_load_dword v50, v11, s[24:27], 0 offen sc1")
        A("  s_memrealtime s[44:45]")
        A("  s_waitcnt lgkmcnt(0) vmcnt(0)")
        A("  v_readfirstlane_b32 s46, v50")
        A("  s_nop 3")
        A("  s_sub_u32 s47, s44, s46")
        A("  s_mul_i32 s47, s47, %d" % probe)
        A("  s_min_u32 s47, s47, 20000")
        A("L_probe:")
        A("  s_memrealtime s[42:43]")
        A("  s_waitcnt lgkmcnt(0)")
        A("  s_sub_u32 s42, s42, s44")
        A("  s_cmp_lt_u32 s42, s47")
        A("  s_cbranch_scc1 L_probe")
    if stamps:
        ST(4)
        A("  s_waitcnt vmcnt(0)")
        ST(5)
        A("  s_cmp_lg_u32 s3, 0")
        A("  s_cbranch_scc1 L_end")
        STOUT(range(0, 6))
    A("L_end:")
    A("  s_endpgm")
    A("L_hrepoll:")
    if not trig:
        A("  s_sleep %d" % asleep)
    A("  s_sub_u32 s35, s35, 1")
    A("  s_cmp_eq_u32 s35, 0")
    A("  s_cbranch_scc1 L_hgot")
    A("L_hre2:")
    for i in range(7):
        A("  s_mov_b64 exec, s[%d:%d]" % (48 + 2 * i, 49 + 2 * i))
        A("  s_cbranch_execz L_hskip%d" % i)
        ld(i)
        A("L_hskip%d:" % i)
    if warm:
        A("  s_cmp_eq_u32 s34, 0")
        A("  s_cbranch_scc1 L_hwarm")
    A("  s_mov_b64 exec, -1")
    A("  s_branch L_hchk")
    PUBLISH_FAR("v5", "a")
    SLOT_SLOW("a")
    SLOT_SLOW("b")
    A('.section .rodata,"a"')
    A(".p2align 6")
    A(".amdhsa_kernel %s_kernel" % NAME)
    A("  .amdhsa_next_free_vgpr 96")
    A("  .amdhsa_next_free_sgpr %d" % (102 if stamps else 80))
    A("  .amdhsa_accum_offset 96")
    A("  .amdhsa_group_segment_fixed_size 0")
    A("  .amdhsa_kernarg_size 56")
    A("  .amdhsa_user_sgpr_count 2")
    A("  .amdhsa_user_sgpr_kernarg_segment_ptr 1")
    A("  .amdhsa_system_sgpr_workgroup_id_x 1")
    A("  .amdhsa_float_denorm_mode_32 3")
    A(".end_amdhsa_kernel")
    return "\n".join(o) + "\n"

if __name__ == "__main__":
    out = sys.argv[1]
    kw = {}
    for a in sys.argv[2:]:
        k, v = a.split("=")
        kw[k] = int(v) if v.isdigit() else (int(v, 16) if v.startswith('0x') else v)
    open(out, "w").write(gen(**kw))
```

```python
import sys
NAME = "standalone__glu_gated_bilinear__decode"
HDR = open('cdna_kernels/%s.s.ref' % NAME).read().split('; Override launch')[0]
MB1 = 64 * 7168
MBH = MB1 + 56 * 8192
MBF = 56 * 256
WSZ = MBH + 2 * MBF

DOC = """
out = ((x Wg) * (x Wu)) Wd in ONE launch; every weight byte is read once, in whole 128-B lines.
Class of a workgroup = id & 7.
WG 0..31   helpers : wave 2 writes {clock, die id} to its slot of the zeroed d_debug; waves 3,4 turn the
           g/u partial sums of one 64-column tile into h; waves 0,1 reduce 16 output columns each.
WG 32..255 workers : waves 0..3 stream 128 rows x 64 columns of Wg or Wu and publish fp32 partial sums;
           waves 4..7 stream 64 rows x 64 columns of Wd and publish fp32 partial outputs.
Hand-offs are 16-B granules {payload, payload, tag64}; the tag is slot 0 of the producer's class, a clock
value taken in this launch, so nothing found in d_ws is ever accepted.  g/u partials use plain stores (and
h is read from its plain-stored copy) only when all four helpers of the class report the worker's own die,
so that the data meets in that die's L2; otherwise the write-through (sc1) forms are used.  Partial
outputs are always write-through.  Any placement gives the same result.
"""

def gen(stamps=0, pol="nt", asleep=2, nat=6, scr=0, warm=1, probe=0, dset=0x4352, wsplit=4, hat=2, hns=20, trig=1, pre=0, delay=0):
    o = []
    A = o.append
    pol = "" if pol == "x" else " " + pol.replace("_", " ")
    SB = 78
    def ST(k):
        if stamps:
            A("  s_memrealtime s[%d:%d]" % (SB + 2 * k, SB + 1 + 2 * k))
    def STOUT(ks):
        if not stamps:
            return
        A("  s_waitcnt lgkmcnt(0)")
        A("  s_mov_b32 s30, 0x10000000")
        A("  s_mov_b64 exec, 1")
        A("  s_add_u32 s33, s2, 224")
        A("  s_and_b32 s33, s33, 255")
        A("  s_lshl_b32 s33, s33, 7")
        A("  s_add_u32 s33, s33, 0x8000000")
        A("  v_mov_b32 v5, s33")
        for k in ks:
            A("  v_mov_b32 v6, s%d" % (SB + 2 * k))
            A("  v_mov_b32 v7, s%d" % (SB + 1 + 2 * k))
            A("  buffer_store_dwordx2 v[6:7], v5, s[28:31], 0 offen offset:%d" % (8 * k))
            A("  s_nop 1")
    def REDUCE8(a):
        for k in range(4):
            A("  v_permlane32_swap_b32 v%d, v%d" % (a + k, a + 4 + k))
        A("  s_nop 0")
        for k in range(4):
            A("  v_add_f32 v%d, v%d, v%d" % (a + k, a + k, a + 4 + k))
        A("  s_nop 0")
        for k in range(2):
            A("  v_permlane16_swap_b32 v%d, v%d" % (a + k, a + 2 + k))
        A("  s_nop 0")
        for k in range(2):
            A("  v_add_f32 v%d, v%d, v%d" % (a + k, a + k, a + 2 + k))
        A("  s_nop 0")
        for k in range(2):
            A("  v_add_f32_dpp v%d, v%d, v%d row_ror:8 row_mask:0xf bank_mask:0xf" % (12 + k, a + k, a + k))
    def SLOT_ISSUE():
        A("  s_load_dwordx8 s[68:75], s[24:25], s65")
    def SLOT_CHECK(tag):
        A("L_sck%s:" % tag)
        A("  s_and_b32 s36, s69, s71")
        A("  s_and_b32 s37, s73, s75")
        A("  s_and_b32 s36, s36, s37")
        A("  s_lshr_b32 s36, s36, 31")
        A("  s_and_b32 s36, s36, s68")
        A("  s_cbranch_scc0 L_sslow%s" % tag)
        A("L_sok%s:" % tag)
        A("  v_mov_b32 v14, s68")
        A("  v_mov_b32 v15, s69")
        A("  s_xor_b32 s36, s69, s40")
        A("  s_xor_b32 s37, s71, s40")
        A("  s_or_b32 s47, s36, s37")
        A("  s_xor_b32 s36, s73, s40")
        A("  s_xor_b32 s37, s75, s40")
        A("  s_or_b32 s36, s36, s37")
        A("  s_or_b32 s47, s47, s36")
        A("  s_and_b32 s47, s47, 0x78000000")
    def SLOT_SLOW(tag):
        A("L_sslow%s:" % tag)
        A("  v_lshlrev_b32 v14, 2, v0")
        A("  buffer_load_dword v15, v14, s[24:27], s65 offen sc1")
        A("  s_sub_u32 s35, s35, 1")
        A("  s_waitcnt vmcnt(0)")
        for i in range(8):
            A("  v_readlane_b32 s%d, v15, %d" % (68 + i, i))
        A("  s_cmp_eq_u32 s35, 0")
        A("  s_cbranch_scc1 L_sok%s" % tag)
        A("  s_branch L_sck%s" % tag)
    def PUBLISH(vaddr, tag):
        A("  s_mov_b32 exec_lo, 0x00ff00ff")
        A("  s_mov_b32 exec_hi, 0x00ff00ff")
        A("  s_cmp_lg_u32 s47, 0")
        A("  s_cbranch_scc1 L_pfar%s" % tag)
        A("  buffer_store_dwordx4 v[12:15], %s, s[28:31], 0 offen" % vaddr)
        A("L_pdone%s:" % tag)
    def PUBLISH_FAR(vaddr, tag):
        A("L_pfar%s:" % tag)
        A("  buffer_store_dwordx4 v[12:15], %s, s[28:31], 0 offen sc1" % vaddr)
        A("  s_branch L_pdone%s" % tag)
    def XCC():
        A("  s_getreg_b32 s40, hwreg(HW_REG_XCC_ID)")
        A("  s_and_b32 s40, s40, 15")
        A("  s_lshl_b32 s40, s40, 27")
    A(HDR.rstrip('\n'))
    A("; @launch grid=(256,1,1) block=(512,1,1) lds=0")
    for line in DOC.strip("\n").split("\n"):
        A((";  " + line).rstrip())
    A('.amdgcn_target "amdgcn-amd-amdhsa--gfx950"')
    A(".text")
    A(".globl %s_kernel" % NAME)
    A(".p2align 8")
    A(".type %s_kernel,@function" % NAME)
    A("%s_kernel:" % NAME)
    ST(0)
    A("  s_load_dwordx2 s[8:9], s[0:1], 8")
    A("  s_load_dwordx2 s[12:13], s[0:1], 16")
    A("  s_load_dwordx2 s[4:5], s[0:1], 0")
    A("  s_load_dwordx2 s[28:29], s[0:1], 48")
    A("  s_load_dwordx2 s[24:25], s[0:1], 40")
    A("  v_readfirstlane_b32 s3, v0")
    if scr:
        A("  s_lshr_b32 s33, s2, 3")
        A("  s_and_b32 s33, s33, 7")
        A("  s_xor_b32 s2, s2, s33")
    A("  v_and_b32 v0, 63, v0")
    A("  s_lshr_b32 s33, s2, 5")
    A("  s_and_b32 s32, s2, 7")
    A("  s_sub_u32 s33, s33, 1")
    A("  s_mov_b32 s31, 0x20000")
    A("  s_mov_b32 s30, %d" % WSZ)
    A("  s_lshr_b32 s3, s3, 6")
    A("  s_cmp_ge_u32 s33, 7")
    A("  s_cbranch_scc1 L_helper")
    A("  s_bfe_u32 s34, s2, 0x20003")
    A("  v_lshrrev_b32 v2, 3, v0")
    A("  v_and_b32 v3, 7, v0")
    for k in range(4):
        A("  v_mov_b32 v%d, 0" % (12 + k))
    A("  s_cmp_ge_u32 s3, 4")
    A("  s_cbranch_scc1 L_ph2")
    A("  s_mul_i32 s36, s32, 7")
    A("  s_lshl_b32 s37, s3, 2")
    A("  s_lshr_b32 s58, 0x%x, s37" % dset)
    A("  s_and_b32 s58, s58, 15")
    A("  s_add_u32 s58, s58, s33")
    A("  s_sub_u32 s57, s58, 7")
    A("  s_min_u32 s58, s58, s57")
    A("  s_add_u32 s58, s58, s36")
    A("  s_and_b32 s57, s3, 1")
    A("  s_lshl1_add_u32 s57, s34, s57")
    A("  s_mul_i32 s36, s57, %d" % (128 * 7168))
    A("  s_lshl_b32 s37, s58, 7")
    A("  s_add_u32 s41, s36, s37")
    A("  v_mul_u32_u24 v1, %d, v2" % (16 * 7168))
    A("  v_lshl_add_u32 v1, v3, 4, v1")
    A("  s_lshl_b32 s37, s57, 8")
    A("  v_lshlrev_b32 v4, 5, v2")
    A("  v_lshrrev_b32 v6, 4, v0")
    A("  v_lshl_add_u32 v6, v3, 2, v6")
    A("  s_lshl_b32 s36, s58, 13")
    A("  s_lshl_b32 s59, s57, 10")
    A("  s_add_u32 s36, s36, s59")
    A("  s_and_b32 s59, s3, 2")
    A("  s_lshl_b32 s59, s59, 8")
    A("  s_add_u32 s36, s36, s59")
    A("  s_add_u32 s36, s36, %d" % MB1)
    A("  v_lshlrev_b32 v5, 4, v6")
    A("  v_add_u32 v5, s36, v5")
    A("  s_movk_i32 s6, 2048")
    A("  s_mov_b32 s7, s31")
    A("  s_mov_b32 s10, 7340032")
    A("  s_mov_b32 s11, s31")
    A("  s_cmp_ge_u32 s3, 2")
    A("  s_waitcnt lgkmcnt(0)")
    A("  s_cselect_b32 s8, s12, s8")
    A("  s_cselect_b32 s9, s13, s9")
    ST(1)
    base = 32
    for i in range(16):
        reg = base + i * 4
        A("  buffer_load_dwordx4 v[%d:%d], v1, s[8:11], s41 offen%s" % (reg, reg + 3, pol))
        if i == 0:
            if pre:
                A("  buffer_store_dwordx4 v[12:15], v5, s[28:31], 0 offen")
            A("  buffer_load_dwordx4 v[24:27], v4, s[4:7], s37 offen")
            A("  buffer_load_dwordx4 v[28:31], v4, s[4:7], s37 offen offset:16")
        if i < 15:
            A("  s_addk_i32 s41, 7168")
    for k in range(8):
        A("  v_mov_b32 v%d, 0" % (16 + k))
    A("  s_mov_b32 s38, 0x05040100")
    A("  s_mov_b32 s39, 0x07060302")
    A("  s_mov_b32 s35, 400000")
    A("  s_lshl_b32 s65, s32, 5")
    A("  s_movk_i32 s26, 256")
    A("  s_mov_b32 s27, s31")
    XCC()
    ST(2)
    for k in range(8):
        A("  s_waitcnt vmcnt(%d)" % (14 - 2 * k))
        if k == nat:
            SLOT_ISSUE()
        r0 = base + 8 * k
        r1 = r0 + 4
        for c in range(4):
            A("  v_perm_b32 v6, v%d, v%d, s38" % (r1 + c, r0 + c))
            A("  v_perm_b32 v7, v%d, v%d, s39" % (r1 + c, r0 + c))
            A("  v_dot2c_f32_bf16 v%d, v%d, v6" % (16 + 2 * c, 24 + k))
            A("  v_dot2c_f32_bf16 v%d, v%d, v7" % (16 + 2 * c + 1, 24 + k))
        if k == 6:
            A("  s_waitcnt lgkmcnt(0)")
            SLOT_CHECK("a")
    ST(3)
    A("  s_nop 1")
    REDUCE8(16)
    PUBLISH("v5", "a")
    ST(5)
    A("  s_barrier")
    if stamps:
        A("  s_cmp_lg_u32 s3, 3")
        A("  s_cbranch_scc1 L_end")
        STOUT([0, 1, 2, 3, 5])
    A("  s_endpgm")
    A("L_ph2:")
    A("  s_load_dwordx2 s[16:17], s[0:1], 24")
    A("  s_mov_b32 s18, 7340032")
    A("  s_mov_b32 s19, s31")
    A("  s_mov_b32 s38, 0x05040100")
    A("  s_mov_b32 s39, 0x07060302")
    A("  s_mov_b32 s35, 400000")
    A("  s_lshl_b32 s65, s32, 5")
    A("  s_movk_i32 s26, 256")
    A("  s_mov_b32 s27, s31")
    A("  s_mul_i32 s36, s32, 7")
    A("  s_add_u32 s33, s33, s36")
    A("  s_and_b32 s64, s3, 3")
    A("  s_lshl2_add_u32 s37, s34, s64")
    A("  s_lshl_b32 s36, s33, 17")
    A("  s_lshl_b32 s59, s37, 7")
    A("  s_add_u32 s41, s36, s59")
    A("  v_lshlrev_b32 v1, 14, v2")
    A("  v_lshl_add_u32 v1, v3, 4, v1")
    A("  v_lshrrev_b32 v4, 1, v3")
    A("  v_mul_u32_u24 v4, 7168, v4")
    A("  v_and_b32 v5, 1, v3")
    A("  v_lshl_add_u32 v4, v5, 6, v4")
    A("  v_lshrrev_b32 v5, 4, v0")
    A("  v_lshl_add_u32 v4, v5, 4, v4")
    A("  s_mul_i32 s36, s37, %d" % (4 * 7168))
    A("  s_lshl_b32 s37, s33, 7")
    A("  s_add_u32 s36, s36, s37")
    A("  v_add_u32 v4, s36, v4")
    A("  s_lshl_b32 s37, s33, 8")
    A("  s_add_u32 s37, s37, %d" % MBH)
    A("  v_lshl_add_u32 v9, v2, 5, s37")
    A("  v_mov_b32 v11, 0")
    XCC()
    if warm:
        A("  s_mov_b64 exec, 0")
        A("  s_branch L_tail2")
        A("L_warm2:")
        A("  s_mov_b64 exec, -1")
    A("  s_waitcnt lgkmcnt(0)")
    wbase = 32
    def HLD():
        A("  buffer_load_dwordx4 v[24:27], v9, s[28:31], s66 offen sc1")
        A("  buffer_load_dwordx4 v[28:31], v9, s[28:31], s66 offen offset:16 sc1")
    for j in range(8):
        if j == wsplit:
            A("  s_barrier")
        reg = wbase + j * 4
        A("  buffer_load_dwordx4 v[%d:%d], v1, s[16:19], s41 offen offset:%d%s" % (reg, reg + 3, (j % 2) * 2048, pol))
        if j % 2 == 1 and j < 7:
            A("  s_addk_i32 s41, 4096")
    SLOT_ISSUE()
    ST(8)
    for k in range(8):
        A("  v_mov_b32 v%d, 0" % (16 + k))
    A("  s_waitcnt lgkmcnt(0)")
    SLOT_CHECK("b")
    A("  s_cselect_b32 s66, %d, 0" % MBF)
    pbase = 64
    for j in range(4):
        A("  s_waitcnt vmcnt(%d)" % ((8 if j > hat else 6) - 2 * j))
        if j == hat:
            HLD()
        r0 = wbase + 8 * j
        r1 = r0 + 4
        for c in range(4):
            A("  v_perm_b32 v%d, v%d, v%d, s38" % (pbase + 8 * j + 2 * c, r1 + c, r0 + c))
            A("  v_perm_b32 v%d, v%d, v%d, s39" % (pbase + 8 * j + 2 * c + 1, r1 + c, r0 + c))
    ST(9)
    A("L_hchk2:")
    A("  s_waitcnt vmcnt(0)")
    A("  v_cmp_ne_u64 s[42:43], s[68:69], v[26:27]")
    A("  v_cmp_ne_u64 vcc, s[68:69], v[30:31]")
    A("  s_or_b64 s[42:43], s[42:43], vcc")
    A("  s_cbranch_scc1 L_hretry")
    A("L_tail2:")
    ST(6)
    hreg = [24, 25, 28, 29]
    for j in range(4):
        for c in range(8):
            A("  v_dot2c_f32_bf16 v%d, v%d, v%d" % (16 + c, hreg[j], pbase + 8 * j + c))
    A("  s_nop 0")
    REDUCE8(16)
    if warm:
        A("  s_cbranch_execz L_warm2")
    A("  s_mov_b32 exec_lo, 0x00ff00ff")
    A("  s_mov_b32 exec_hi, 0x00ff00ff")
    A("  buffer_store_dwordx4 v[12:15], v4, s[28:31], 0 offen sc1")
    if stamps:
        ST(10)
        A("  s_waitcnt vmcnt(0)")
        ST(11)
        A("  s_cmp_lg_u32 s3, 7")
        A("  s_cbranch_scc1 L_end")
        STOUT([6, 8, 9, 10, 11])
    A("  s_endpgm")
    A("L_hretry:")
    HLD()
    A("  s_sub_u32 s35, s35, 1")
    A("  s_cmp_eq_u32 s35, 0")
    A("  s_cbranch_scc0 L_hchk2")
    A("  s_branch L_tail2")
    A("L_helper:")
    A("  s_cmp_ge_u32 s2, 32")
    A("  s_cbranch_scc1 L_end")
    A("  s_cmp_ge_u32 s3, 5")
    A("  s_cbranch_scc1 L_end")
    A("  s_movk_i32 s26, 256")
    A("  s_mov_b32 s27, s31")
    A("  s_lshl_b32 s65, s32, 5")
    A("  s_lshr_b32 s33, s2, 3")
    A("  v_mov_b32 v11, 0")
    A("  s_cmp_lg_u32 s3, 2")
    A("  s_cbranch_scc1 L_hcons")
    A("  s_memrealtime s[44:45]")
    XCC()
    A("  s_lshl3_add_u32 s37, s33, s65")
    A("  v_mov_b32 v16, 0")
    A("  v_mov_b32 v17, 0")
    A("  s_mov_b64 exec, 1")
    A("  s_waitcnt lgkmcnt(0)")
    A("  s_or_b32 s44, s44, 1")
    A("  s_and_b32 s45, s45, 0x07ffffff")
    A("  s_or_b32 s45, s45, s40")
    A("  s_bitset1_b32 s45, 31")
    A("  v_mov_b32 v14, s44")
    A("  v_mov_b32 v15, s45")
    A("  buffer_atomic_cmpswap_x2 v[14:17], v11, s[24:27], s37 offen sc1")
    if stamps:
        A("  s_waitcnt vmcnt(0)")
        ST(6)
        STOUT([6])
    A("  s_endpgm")
    A("L_hcons:")
    A("  s_load_dwordx2 s[20:21], s[0:1], 32")
    A("  s_movk_i32 s22, 2048")
    A("  s_mov_b32 s23, s31")
    A("  s_mov_b32 s35, 400000")
    A("  s_movk_i32 s41, 4096")
    A("  v_lshlrev_b32 v10, 4, v0")
    A("  s_cmp_lt_u32 s3, 2")
    A("  s_cbranch_scc1 L_hred")
    A("  s_lshl1_add_u32 s33, s33, s3")
    A("  s_sub_u32 s33, s33, 3")
    A("  s_cmp_ge_u32 s33, 7")
    A("  s_cbranch_scc1 L_end")
    A("  s_mul_i32 s36, s32, 7")
    A("  s_add_u32 s33, s33, s36")
    A("  s_lshl_b32 s36, s33, 13")
    A("  s_add_u32 s36, s36, %d" % MB1)
    A("  v_add_u32 v10, s36, v10")
    A("  s_lshl_b32 s36, s33, 8")
    A("  s_add_u32 s36, s36, %d" % MBH)
    A("  v_and_b32 v5, 31, v0")
    A("  v_lshrrev_b32 v5, 1, v5")
    A("  v_lshl_add_u32 v5, v5, 4, s36")
    A("  s_movk_i32 s64, %d" % MBF)
    if warm:
        A("  s_mov_b64 exec, 0")
        A("  s_branch L_got1")
        A("L_hhwarm:")
        A("  s_mov_b64 exec, -1")
    A("  s_waitcnt lgkmcnt(0)")
    for k in range(4):
        A("  v_mov_b32 v%d, 0" % (12 + k))
    A("  buffer_store_dwordx4 v[12:15], v5, s[28:31], 0 offen")
    def TAGWAIT(lbl):
        A("%s:" % lbl)
        A("  s_sleep %d" % hns)
        A("  buffer_load_dwordx2 v[14:15], v11, s[24:27], s65 offen sc1")
        A("  s_sub_u32 s35, s35, 1")
        A("  s_cmp_eq_u32 s35, 0")
        A("  s_cbranch_scc1 L_end")
        A("  s_waitcnt vmcnt(0)")
        A("  v_min_u32 v6, v14, v15")
        A("  v_cmp_eq_u32 vcc, 0, v6")
        A("  s_cbranch_vccnz %s" % lbl)
    TAGWAIT("L_hhn")
    def ld(s):
        A("  buffer_load_dwordx4 v[%d:%d], v10, s[28:31], %s offen offset:%d sc1" % (32 + 4 * s, 35 + 4 * s, "0" if s < 4 else "s41", (s % 4) * 1024))
    for s in range(8):
        ld(s)
    A("L_poll1chk:")
    A("  s_waitcnt vmcnt(0)")
    for s in range(8):
        A("  v_cmp_ne_u64 s[%d:%d], v[%d:%d], v[14:15]" % (48 + 2 * s, 49 + 2 * s, 34 + 4 * s, 35 + 4 * s))
    for s in range(0, 8, 2):
        A("  v_add_f32 v%d, v%d, v%d" % (16 + s, 32 + 4 * s, 36 + 4 * s))
        A("  v_add_f32 v%d, v%d, v%d" % (17 + s, 33 + 4 * s, 37 + 4 * s))
    A("  s_or_b64 s[42:43], s[48:49], s[50:51]")
    A("  v_add_f32 v16, v16, v18")
    A("  s_or_b64 s[44:45], s[52:53], s[54:55]")
    A("  v_add_f32 v17, v17, v19")
    A("  s_or_b64 s[66:67], s[56:57], s[58:59]")
    A("  v_add_f32 v20, v20, v22")
    A("  s_or_b64 s[68:69], s[60:61], s[62:63]")
    A("  v_add_f32 v21, v21, v23")
    A("  s_or_b64 s[42:43], s[42:43], s[44:45]")
    A("  v_add_f32 v16, v16, v20")
    A("  s_or_b64 s[66:67], s[66:67], s[68:69]")
    A("  v_add_f32 v17, v17, v21")
    A("  v_cvt_pk_bf16_f32 v18, v16, v17")
    A("  v_mov_b32 v19, v18")
    A("  s_or_b64 s[42:43], s[42:43], s[66:67]")
    A("  s_cbranch_scc1 L_repoll")
    A("L_got1:")
    A("  v_permlane32_swap_b32 v18, v19")
    A("  s_nop 1")
    A("  v_lshlrev_b32 v16, 16, v18")
    A("  v_and_b32 v17, 0xffff0000, v18")
    A("  v_lshlrev_b32 v20, 16, v19")
    A("  v_and_b32 v21, 0xffff0000, v19")
    A("  v_mul_f32 v16, v16, v20")
    A("  v_mul_f32 v17, v17, v21")
    A("  v_cvt_pk_bf16_f32 v12, v16, v17")
    A("  s_nop 1")
    A("  v_mov_b32_dpp v13, v12 quad_perm:[1,0,3,2] row_mask:0xf bank_mask:0xf")
    if warm:
        A("  s_cbranch_execz L_hhwarm")
    A("  s_mov_b32 exec_lo, 0x55555555")
    A("  s_mov_b32 exec_hi, 0")
    A("  buffer_store_dwordx4 v[12:15], v5, s[28:31], 0 offen")
    A("  buffer_store_dwordx4 v[12:15], v5, s[28:31], s64 offen sc1")
    if stamps:
        ST(7)
        A("  s_cmp_lg_u32 s3, 3")
        A("  s_cbranch_scc1 L_end")
        STOUT([7])
    A("  s_endpgm")
    A("L_repoll:")
    A("  s_sub_u32 s35, s35, 1")
    A("  s_cmp_eq_u32 s35, 0")
    A("  s_cbranch_scc1 L_got1")
    for s in range(8):
        A("  s_mov_b64 exec, s[%d:%d]" % (48 + 2 * s, 49 + 2 * s))
        A("  s_cbranch_execz L_p1skip%d" % s)
        ld(s)
        A("L_p1skip%d:" % s)
    A("  s_mov_b64 exec, -1")
    A("  s_branch L_poll1chk")
    A("L_hred:")
    A("  s_lshl1_add_u32 s33, s2, s3")
    A("  s_mul_i32 s36, s33, 7168")
    A("  v_add_u32 v10, s36, v10")
    A("  v_and_b32 v3, 7, v0")
    A("  v_lshlrev_b32 v3, 2, v3")
    A("  v_lshrrev_b32 v4, 5, v0")
    A("  v_lshl_add_u32 v3, v4, 1, v3")
    A("  s_lshl_b32 s36, s33, 5")
    A("  v_add_u32 v3, s36, v3")
    A("  v_lshrrev_b32 v4, 3, v0")
    for i in range(7):
        A("  v_add_u32 v5, %d, v4" % (8 * i))
        A("  v_mul_u32_u24 v5, 37, v5")
        A("  v_lshrrev_b32 v5, 8, v5")
        A("  v_lshlrev_b32 v%d, 5, v5" % (80 + i))
    A("  s_mov_b32 s34, 0")
    if warm:
        for r in range(48, 62, 2):
            A("  s_mov_b64 s[%d:%d], 0" % (r, r + 1))
        A("  s_mov_b64 exec, 0")
        A("  s_branch L_hchk")
        A("L_hwarm:")
        A("  s_mov_b64 exec, -1")
        A("  s_mov_b32 s34, 1")
    A("  s_waitcnt lgkmcnt(0)")
    ST(1)
    A("L_hnonce:")
    A("  s_sleep %d" % hns)
    for i in range(7):
        A("  buffer_load_dwordx2 v[%d:%d], v%d, s[24:27], 0 offen sc1" % (64 + 2 * i, 65 + 2 * i, 80 + i))
    A("  s_sub_u32 s35, s35, 1")
    A("  s_cmp_eq_u32 s35, 0")
    A("  s_cbranch_scc1 L_end")
    A("  s_waitcnt vmcnt(0)")
    A("  v_min3_u32 v6, v64, v65, v66")
    for r in range(67, 77, 2):
        A("  v_min3_u32 v6, v6, v%d, v%d" % (r, r + 1))
    A("  v_min_u32 v6, v6, v77")
    A("  v_cmp_eq_u32 vcc, 0, v6")
    A("  s_cbranch_vccnz L_hnonce")
    ST(2)
    if trig:
        A("  s_mov_b32 exec_lo, 0x01010101")
        A("  s_mov_b32 exec_hi, 0x01010101")
        A("L_hwait:")
        A("  buffer_load_dwordx4 v[32:35], v10, s[28:31], 0 offen sc1")
        A("  s_sub_u32 s35, s35, 1")
        A("  s_cmp_eq_u32 s35, 0")
        A("  s_cbranch_scc1 L_end")
        A("  s_waitcnt vmcnt(0)")
        A("  v_cmp_eq_u64 vcc, v[34:35], v[64:65]")
        A("  s_cbranch_vccnz L_hgo")
        A("  s_sleep %d" % asleep)
        A("  s_branch L_hwait")
        A("L_hgo:")
        A("  s_mov_b64 exec, -1")
    for i in range(7):
        ld(i)
    A("L_hchk:")
    A("  s_waitcnt vmcnt(0)")
    for i in range(7):
        A("  v_cmp_ne_u64 s[%d:%d], v[%d:%d], v[%d:%d]" % (48 + 2 * i, 49 + 2 * i, 34 + 4 * i, 35 + 4 * i, 64 + 2 * i, 65 + 2 * i))
    A("  v_add_f32 v16, v32, v36")
    A("  v_add_f32 v17, v33, v37")
    A("  v_add_f32 v18, v40, v44")
    A("  v_add_f32 v19, v41, v45")
    A("  v_add_f32 v20, v48, v52")
    A("  v_add_f32 v21, v49, v53")
    A("  s_or_b64 s[42:43], s[48:49], s[50:51]")
    A("  v_add_f32 v16, v16, v56")
    A("  s_or_b64 s[44:45], s[52:53], s[54:55]")
    A("  v_add_f32 v17, v17, v57")
    A("  s_or_b64 s[46:47], s[56:57], s[58:59]")
    A("  v_add_f32 v18, v18, v20")
    A("  s_or_b64 s[42:43], s[42:43], s[60:61]")
    A("  v_add_f32 v19, v19, v21")
    A("  s_or_b64 s[44:45], s[44:45], s[46:47]")
    A("  v_add_f32 v16, v16, v18")
    A("  v_add_f32 v17, v17, v19")
    A("  s_or_b64 s[42:43], s[42:43], s[44:45]")
    A("  s_cbranch_scc1 L_hrepoll")
    A("L_hgot:")
    ST(3)
    A("  v_permlane32_swap_b32 v16, v17")
    A("  s_nop 1")
    A("  v_add_f32 v16, v16, v17")
    A("  s_nop 1")
    A("  v_add_f32_dpp v16, v16, v16 row_ror:8 row_mask:0xf bank_mask:0xf")
    A("  s_nop 1")
    A("  v_mov_b32 v17, v16")
    A("  s_nop 1")
    A("  v_permlane16_swap_b32 v16, v17")
    A("  s_nop 1")
    A("  v_add_f32 v16, v16, v17")
    A("  v_cvt_pk_bf16_f32 v16, v16, v16")
    if warm:
        A("  s_cbranch_execz L_hre2")
    A("  s_mov_b32 exec_lo, 0xff")
    A("  s_mov_b32 exec_hi, 0xff")
    A("  buffer_store_short v16, v3, s[20:23], 0 offen")
    if delay:
        A("  s_memrealtime s[44:45]")
        A("  s_waitcnt lgkmcnt(0)")
        A("L_delay:")
        A("  s_memrealtime s[42:43]")
        A("  s_waitcnt lgkmcnt(0)")
        A("  s_sub_u32 s42, s42, s44")
        A("  s_cmp_lt_u32 s42, %d" % delay)
        A("  s_cbranch_scc1 L_delay")
    if probe:
        A("  s_mov_b64 exec, -1")
        A("  buffer_load_dword v50, v11, s[24:27], 0 offen sc1")
        A("  s_memrealtime s[44:45]")
        A("  s_waitcnt lgkmcnt(0) vmcnt(0)")
        A("  v_readfirstlane_b32 s46, v50")
        A("  s_nop 3")
        A("  s_sub_u32 s47, s44, s46")
        A("  s_mul_i32 s47, s47, %d" % probe)
        A("  s_min_u32 s47, s47, 20000")
        A("L_probe:")
        A("  s_memrealtime s[42:43]")
        A("  s_waitcnt lgkmcnt(0)")
        A("  s_sub_u32 s42, s42, s44")
        A("  s_cmp_lt_u32 s42, s47")
        A("  s_cbranch_scc1 L_probe")
    if stamps:
        ST(4)
        A("  s_waitcnt vmcnt(0)")
        ST(5)
        A("  s_cmp_lg_u32 s3, 0")
        A("  s_cbranch_scc1 L_end")
        STOUT(range(0, 6))
    A("L_end:")
    A("  s_endpgm")
    A("L_hrepoll:")
    if not trig:
        A("  s_sleep %d" % asleep)
    A("  s_sub_u32 s35, s35, 1")
    A("  s_cmp_eq_u32 s35, 0")
    A("  s_cbranch_scc1 L_hgot")
    A("L_hre2:")
    for i in range(7):
        A("  s_mov_b64 exec, s[%d:%d]" % (48 + 2 * i, 49 + 2 * i))
        A("  s_cbranch_execz L_hskip%d" % i)
        ld(i)
        A("L_hskip%d:" % i)
    if warm:
        A("  s_cmp_eq_u32 s34, 0")
        A("  s_cbranch_scc1 L_hwarm")
    A("  s_mov_b64 exec, -1")
    A("  s_branch L_hchk")
    PUBLISH_FAR("v5", "a")
    SLOT_SLOW("a")
    SLOT_SLOW("b")
    A('.section .rodata,"a"')
    A(".p2align 6")
    A(".amdhsa_kernel %s_kernel" % NAME)
    A("  .amdhsa_next_free_vgpr 96")
    A("  .amdhsa_next_free_sgpr %d" % (102 if stamps else 80))
    A("  .amdhsa_accum_offset 96")
    A("  .amdhsa_group_segment_fixed_size 0")
    A("  .amdhsa_kernarg_size 56")
    A("  .amdhsa_user_sgpr_count 2")
    A("  .amdhsa_user_sgpr_kernarg_segment_ptr 1")
    A("  .amdhsa_system_sgpr_workgroup_id_x 1")
    A("  .amdhsa_float_denorm_mode_32 3")
    A(".end_amdhsa_kernel")
    return "\n".join(o) + "\n"

if __name__ == "__main__":
    out = sys.argv[1]
    kw = {}
    for a in sys.argv[2:]:
        k, v = a.split("=")
        kw[k] = int(v) if v.isdigit() else (int(v, 16) if v.startswith('0x') else v)
    open(out, "w").write(gen(**kw))
```

```python
import sys
NAME = "standalone__glu_gated_bilinear__decode"
HDR = open('cdna_kernels/%s.s.ref' % NAME).read().split('; Override launch')[0]
MB1 = 64 * 7168
MBH = MB1 + 56 * 8192
MBF = 56 * 256
WSZ = MBH + 2 * MBF

DOC = """
out = ((x Wg) * (x Wu)) Wd in ONE launch; every weight byte is read once, in whole 128-B lines.
Class of a workgroup = id & 7.
WG 0..31   helpers : wave 2 writes {clock, die id} to its slot of the zeroed d_debug; waves 3,4 turn the
           g/u partial sums of one 64-column tile into h; waves 0,1 reduce 16 output columns each.
WG 32..255 workers : waves 0..3 stream 128 rows x 64 columns of Wg or Wu and publish fp32 partial sums;
           waves 4..7 stream 64 rows x 64 columns of Wd and publish fp32 partial outputs.
Hand-offs are 16-B granules {payload, payload, tag64}; the tag is slot 0 of the producer's class, a clock
value taken in this launch, so nothing found in d_ws is ever accepted.  g/u partials use plain stores (and
h is read from its plain-stored copy) only when all four helpers of the class report the worker's own die,
so that the data meets in that die's L2; otherwise the write-through (sc1) forms are used.  Partial
outputs are always write-through.  Any placement gives the same result.
"""

def gen(stamps=0, pol="nt", asleep=2, nat=6, scr=0, warm=1, probe=0, dset=0x4352, wsplit=4, hat=2, hns=20, trig=1, pre=0, delay=0, wall=1):
    o = []
    A = o.append
    pol = "" if pol == "x" else " " + pol.replace("_", " ")
    SB = 78
    def ST(k):
        if stamps:
            A("  s_memrealtime s[%d:%d]" % (SB + 2 * k, SB + 1 + 2 * k))
    def STOUT(ks):
        if not stamps:
            return
        A("  s_waitcnt lgkmcnt(0)")
        A("  s_mov_b32 s30, 0x10000000")
        A("  s_mov_b64 exec, 1")
        A("  s_add_u32 s33, s2, 224")
        A("  s_and_b32 s33, s33, 255")
        A("  s_lshl_b32 s33, s33, 7")
        A("  s_add_u32 s33, s33, 0x8000000")
        A("  v_mov_b32 v5, s33")
        for k in ks:
            A("  v_mov_b32 v6, s%d" % (SB + 2 * k))
            A("  v_mov_b32 v7, s%d" % (SB + 1 + 2 * k))
            A("  buffer_store_dwordx2 v[6:7], v5, s[28:31], 0 offen offset:%d" % (8 * k))
            A("  s_nop 1")
    def REDUCE8(a):
        for k in range(4):
            A("  v_permlane32_swap_b32 v%d, v%d" % (a + k, a + 4 + k))
        A("  s_nop 0")
        for k in range(4):
            A("  v_add_f32 v%d, v%d, v%d" % (a + k, a + k, a + 4 + k))
        A("  s_nop 0")
        for k in range(2):
            A("  v_permlane16_swap_b32 v%d, v%d" % (a + k, a + 2 + k))
        A("  s_nop 0")
        for k in range(2):
            A("  v_add_f32 v%d, v%d, v%d" % (a + k, a + k, a + 2 + k))
        A("  s_nop 0")
        for k in range(2):
            A("  v_add_f32_dpp v%d, v%d, v%d row_ror:8 row_mask:0xf bank_mask:0xf" % (12 + k, a + k, a + k))
    def SLOT_ISSUE():
        A("  s_load_dwordx8 s[68:75], s[24:25], s65")
    def SLOT_CHECK(tag):
        A("L_sck%s:" % tag)
        A("  s_and_b32 s36, s69, s71")
        A("  s_and_b32 s37, s73, s75")
        A("  s_and_b32 s36, s36, s37")
        A("  s_lshr_b32 s36, s36, 31")
        A("  s_and_b32 s36, s36, s68")
        A("  s_cbranch_scc0 L_sslow%s" % tag)
        A("L_sok%s:" % tag)
        A("  v_mov_b32 v14, s68")
        A("  v_mov_b32 v15, s69")
        A("  s_xor_b32 s36, s69, s40")
        A("  s_xor_b32 s37, s71, s40")
        A("  s_or_b32 s47, s36, s37")
        A("  s_xor_b32 s36, s73, s40")
        A("  s_xor_b32 s37, s75, s40")
        A("  s_or_b32 s36, s36, s37")
        A("  s_or_b32 s47, s47, s36")
        A("  s_and_b32 s47, s47, 0x78000000")
    def SLOT_SLOW(tag):
        A("L_sslow%s:" % tag)
        A("  v_lshlrev_b32 v14, 2, v0")
        A("  buffer_load_dword v15, v14, s[24:27], s65 offen sc1")
        A("  s_sub_u32 s35, s35, 1")
        A("  s_waitcnt vmcnt(0)")
        for i in range(8):
            A("  v_readlane_b32 s%d, v15, %d" % (68 + i, i))
        A("  s_cmp_eq_u32 s35, 0")
        A("  s_cbranch_scc1 L_sok%s" % tag)
        A("  s_branch L_sck%s" % tag)
    def PUBLISH(vaddr, tag):
        A("  s_mov_b32 exec_lo, 0x00ff00ff")
        A("  s_mov_b32 exec_hi, 0x00ff00ff")
        A("  s_cmp_lg_u32 s47, 0")
        A("  s_cbranch_scc1 L_pfar%s" % tag)
        A("  buffer_store_dwordx4 v[12:15], %s, s[28:31], 0 offen" % vaddr)
        A("L_pdone%s:" % tag)
    def PUBLISH_FAR(vaddr, tag):
        A("L_pfar%s:" % tag)
        A("  buffer_store_dwordx4 v[12:15], %s, s[28:31], 0 offen sc1" % vaddr)
        A("  s_branch L_pdone%s" % tag)
    def XCC():
        A("  s_getreg_b32 s40, hwreg(HW_REG_XCC_ID)")
        A("  s_and_b32 s40, s40, 15")
        A("  s_lshl_b32 s40, s40, 27")
    A(HDR.rstrip('\n'))
    A("; @launch grid=(256,1,1) block=(512,1,1) lds=0")
    for line in DOC.strip("\n").split("\n"):
        A((";  " + line).rstrip())
    A('.amdgcn_target "amdgcn-amd-amdhsa--gfx950"')
    A(".text")
    A(".globl %s_kernel" % NAME)
    A(".p2align 8")
    A(".type %s_kernel,@function" % NAME)
    A("%s_kernel:" % NAME)
    ST(0)
    A("  s_load_dwordx2 s[8:9], s[0:1], 8")
    A("  s_load_dwordx2 s[12:13], s[0:1], 16")
    A("  s_load_dwordx2 s[4:5], s[0:1], 0")
    A("  s_load_dwordx2 s[28:29], s[0:1], 48")
    A("  s_load_dwordx2 s[24:25], s[0:1], 40")
    A("  v_readfirstlane_b32 s3, v0")
    if scr:
        A("  s_lshr_b32 s33, s2, 3")
        A("  s_and_b32 s33, s33, 7")
        A("  s_xor_b32 s2, s2, s33")
    A("  v_and_b32 v0, 63, v0")
    A("  s_lshr_b32 s33, s2, 5")
    A("  s_and_b32 s32, s2, 7")
    A("  s_sub_u32 s33, s33, 1")
    A("  s_mov_b32 s31, 0x20000")
    A("  s_mov_b32 s30, %d" % WSZ)
    A("  s_lshr_b32 s3, s3, 6")
    A("  s_cmp_ge_u32 s33, 7")
    A("  s_cbranch_scc1 L_helper")
    A("  s_bfe_u32 s34, s2, 0x20003")
    A("  v_lshrrev_b32 v2, 3, v0")
    A("  v_and_b32 v3, 7, v0")
    for k in range(4):
        A("  v_mov_b32 v%d, 0" % (12 + k))
    A("  s_cmp_ge_u32 s3, 4")
    A("  s_cbranch_scc1 L_ph2")
    A("  s_mul_i32 s36, s32, 7")
    A("  s_lshl_b32 s37, s3, 2")
    A("  s_lshr_b32 s58, 0x%x, s37" % dset)
    A("  s_and_b32 s58, s58, 15")
    A("  s_add_u32 s58, s58, s33")
    A("  s_sub_u32 s57, s58, 7")
    A("  s_min_u32 s58, s58, s57")
    A("  s_add_u32 s58, s58, s36")
    A("  s_and_b32 s57, s3, 1")
    A("  s_lshl1_add_u32 s57, s34, s57")
    A("  s_mul_i32 s36, s57, %d" % (128 * 7168))
    A("  s_lshl_b32 s37, s58, 7")
    A("  s_add_u32 s41, s36, s37")
    A("  v_mul_u32_u24 v1, %d, v2" % (16 * 7168))
    A("  v_lshl_add_u32 v1, v3, 4, v1")
    A("  s_lshl_b32 s37, s57, 8")
    A("  v_lshlrev_b32 v4, 5, v2")
    A("  v_lshrrev_b32 v6, 4, v0")
    A("  v_lshl_add_u32 v6, v3, 2, v6")
    A("  s_lshl_b32 s36, s58, 13")
    A("  s_lshl_b32 s59, s57, 10")
    A("  s_add_u32 s36, s36, s59")
    A("  s_and_b32 s59, s3, 2")
    A("  s_lshl_b32 s59, s59, 8")
    A("  s_add_u32 s36, s36, s59")
    A("  s_add_u32 s36, s36, %d" % MB1)
    A("  v_lshlrev_b32 v5, 4, v6")
    A("  v_add_u32 v5, s36, v5")
    A("  s_movk_i32 s6, 2048")
    A("  s_mov_b32 s7, s31")
    A("  s_mov_b32 s10, 7340032")
    A("  s_mov_b32 s11, s31")
    A("  s_cmp_ge_u32 s3, 2")
    A("  s_waitcnt lgkmcnt(0)")
    A("  s_cselect_b32 s8, s12, s8")
    A("  s_cselect_b32 s9, s13, s9")
    ST(1)
    base = 32
    for i in range(16):
        reg = base + i * 4
        A("  buffer_load_dwordx4 v[%d:%d], v1, s[8:11], s41 offen%s" % (reg, reg + 3, pol))
        if i == 0:
            if pre:
                A("  buffer_store_dwordx4 v[12:15], v5, s[28:31], 0 offen")
            A("  buffer_load_dwordx4 v[24:27], v4, s[4:7], s37 offen")
            A("  buffer_load_dwordx4 v[28:31], v4, s[4:7], s37 offen offset:16")
        if i < 15:
            A("  s_addk_i32 s41, 7168")
    for k in range(8):
        A("  v_mov_b32 v%d, 0" % (16 + k))
    A("  s_mov_b32 s38, 0x05040100")
    A("  s_mov_b32 s39, 0x07060302")
    A("  s_mov_b32 s35, 400000")
    A("  s_lshl_b32 s65, s32, 5")
    A("  s_movk_i32 s26, 256")
    A("  s_mov_b32 s27, s31")
    XCC()
    ST(2)
    for k in range(8):
        A("  s_waitcnt vmcnt(%d)" % (14 - 2 * k))
        if k == nat:
            SLOT_ISSUE()
        r0 = base + 8 * k
        r1 = r0 + 4
        for c in range(4):
            A("  v_perm_b32 v6, v%d, v%d, s38" % (r1 + c, r0 + c))
            A("  v_perm_b32 v7, v%d, v%d, s39" % (r1 + c, r0 + c))
            A("  v_dot2c_f32_bf16 v%d, v%d, v6" % (16 + 2 * c, 24 + k))
            A("  v_dot2c_f32_bf16 v%d, v%d, v7" % (16 + 2 * c + 1, 24 + k))
        if k == 6:
            A("  s_waitcnt lgkmcnt(0)")
            SLOT_CHECK("a")
    ST(3)
    A("  s_nop 1")
    REDUCE8(16)
    PUBLISH("v5", "a")
    ST(5)
    A("  s_barrier")
    if stamps:
        A("  s_cmp_lg_u32 s3, 3")
        A("  s_cbranch_scc1 L_end")
        STOUT([0, 1, 2, 3, 5])
    A("  s_endpgm")
    A("L_ph2:")
    A("  s_load_dwordx2 s[16:17], s[0:1], 24")
    A("  s_mov_b32 s18, 7340032")
    A("  s_mov_b32 s19, s31")
    A("  s_mov_b32 s38, 0x05040100")
    A("  s_mov_b32 s39, 0x07060302")
    A("  s_mov_b32 s35, 400000")
    A("  s_lshl_b32 s65, s32, 5")
    A("  s_movk_i32 s26, 256")
    A("  s_mov_b32 s27, s31")
    A("  s_mul_i32 s36, s32, 7")
    A("  s_add_u32 s33, s33, s36")
    A("  s_and_b32 s64, s3, 3")
    A("  s_lshl2_add_u32 s37, s34, s64")
    A("  s_lshl_b32 s36, s33, 17")
    A("  s_lshl_b32 s59, s37, 7")
    A("  s_add_u32 s41, s36, s59")
    A("  v_lshlrev_b32 v1, 14, v2")
    A("  v_lshl_add_u32 v1, v3, 4, v1")
    A("  v_lshrrev_b32 v4, 1, v3")
    A("  v_mul_u32_u24 v4, 7168, v4")
    A("  v_and_b32 v5, 1, v3")
    A("  v_lshl_add_u32 v4, v5, 6, v4")
    A("  v_lshrrev_b32 v5, 4, v0")
    A("  v_lshl_add_u32 v4, v5, 4, v4")
    A("  s_mul_i32 s36, s37, %d" % (4 * 7168))
    A("  s_lshl_b32 s37, s33, 7")
    A("  s_add_u32 s36, s36, s37")
    A("  v_add_u32 v4, s36, v4")
    A("  s_lshl_b32 s37, s33, 8")
    A("  s_add_u32 s37, s37, %d" % MBH)
    A("  v_lshl_add_u32 v9, v2, 5, s37")
    A("  v_mov_b32 v11, 0")
    XCC()
    if warm:
        A("  s_mov_b64 exec, 0")
        A("  s_branch L_tail2")
        A("L_warm2:")
        A("  s_mov_b64 exec, -1")
    A("  s_waitcnt lgkmcnt(0)")
    wbase = 32
    def HLD():
        A("  buffer_load_dwordx4 v[24:27], v9, s[28:31], s66 offen sc1")
        A("  buffer_load_dwordx4 v[28:31], v9, s[28:31], s66 offen offset:16 sc1")
    for j in range(8):
        if j == wsplit:
            A("  s_barrier")
        reg = wbase + j * 4
        A("  buffer_load_dwordx4 v[%d:%d], v1, s[16:19], s41 offen offset:%d%s" % (reg, reg + 3, (j % 2) * 2048, pol))
        if j % 2 == 1 and j < 7:
            A("  s_addk_i32 s41, 4096")
    SLOT_ISSUE()
    ST(8)
    for k in range(8):
        A("  v_mov_b32 v%d, 0" % (16 + k))
    A("  s_waitcnt lgkmcnt(0)")
    SLOT_CHECK("b")
    A("  s_cselect_b32 s66, %d, 0" % MBF)
    pbase = 64
    for j in range(4):
        A("  s_waitcnt vmcnt(%d)" % ((8 if j > hat else 6) - 2 * j))
        if j == hat:
            HLD()
        r0 = wbase + 8 * j
        r1 = r0 + 4
        for c in range(4):
            A("  v_perm_b32 v%d, v%d, v%d, s38" % (pbase + 8 * j + 2 * c, r1 + c, r0 + c))
            A("  v_perm_b32 v%d, v%d, v%d, s39" % (pbase + 8 * j + 2 * c + 1, r1 + c, r0 + c))
    ST(9)
    A("L_hchk2:")
    A("  s_waitcnt vmcnt(0)")
    A("  v_cmp_ne_u64 s[42:43], s[68:69], v[26:27]")
    A("  v_cmp_ne_u64 vcc, s[68:69], v[30:31]")
    A("  s_or_b64 s[42:43], s[42:43], vcc")
    A("  s_cbranch_scc1 L_hretry")
    A("L_tail2:")
    ST(6)
    hreg = [24, 25, 28, 29]
    for j in range(4):
        for c in range(8):
            A("  v_dot2c_f32_bf16 v%d, v%d, v%d" % (16 + c, hreg[j], pbase + 8 * j + c))
    A("  s_nop 0")
    REDUCE8(16)
    if warm:
        A("  s_cbranch_execz L_warm2")
    A("  s_mov_b32 exec_lo, 0x00ff00ff")
    A("  s_mov_b32 exec_hi, 0x00ff00ff")
    A("  buffer_store_dwordx4 v[12:15], v4, s[28:31], 0 offen sc1")
    if stamps:
        ST(10)
        A("  s_waitcnt vmcnt(0)")
        ST(11)
        A("  s_cmp_lg_u32 s3, 7")
        A("  s_cbranch_scc1 L_end")
        STOUT([6, 8, 9, 10, 11])
    A("  s_endpgm")
    A("L_hretry:")
    HLD()
    A("  s_sub_u32 s35, s35, 1")
    A("  s_cmp_eq_u32 s35, 0")
    A("  s_cbranch_scc0 L_hchk2")
    A("  s_branch L_tail2")
    A("L_helper:")
    A("  s_cmp_ge_u32 s2, 32")
    A("  s_cbranch_scc1 L_end")
    A("  s_cmp_ge_u32 s3, 5")
    A("  s_cbranch_scc1 L_end")
    A("  s_movk_i32 s26, 256")
    A("  s_mov_b32 s27, s31")
    A("  s_lshl_b32 s65, s32, 5")
    A("  s_lshr_b32 s33, s2, 3")
    A("  v_mov_b32 v11, 0")
    A("  s_cmp_lg_u32 s3, 2")
    A("  s_cbranch_scc1 L_hcons")
    A("  s_memrealtime s[44:45]")
    XCC()
    A("  s_lshl3_add_u32 s37, s33, s65")
    A("  v_mov_b32 v16, 0")
    A("  v_mov_b32 v17, 0")
    A("  s_mov_b64 exec, 1")
    A("  s_waitcnt lgkmcnt(0)")
    A("  s_or_b32 s44, s44, 1")
    A("  s_and_b32 s45, s45, 0x07ffffff")
    A("  s_or_b32 s45, s45, s40")
    A("  s_bitset1_b32 s45, 31")
    A("  v_mov_b32 v14, s44")
    A("  v_mov_b32 v15, s45")
    A("  buffer_atomic_cmpswap_x2 v[14:17], v11, s[24:27], s37 offen sc1")
    if stamps:
        A("  s_waitcnt vmcnt(0)")
        ST(6)
        STOUT([6])
    A("  s_endpgm")
    A("L_hcons:")
    A("  s_load_dwordx2 s[20:21], s[0:1], 32")
    A("  s_movk_i32 s22, 2048")
    A("  s_mov_b32 s23, s31")
    A("  s_mov_b32 s35, 400000")
    A("  s_movk_i32 s41, 4096")
    A("  v_lshlrev_b32 v10, 4, v0")
    A("  s_cmp_lt_u32 s3, 2")
    A("  s_cbranch_scc1 L_hred")
    A("  s_lshl1_add_u32 s33, s33, s3")
    A("  s_sub_u32 s33, s33, 3")
    A("  s_cmp_ge_u32 s33, 7")
    A("  s_cbranch_scc1 L_end")
    A("  s_mul_i32 s36, s32, 7")
    A("  s_add_u32 s33, s33, s36")
    A("  s_lshl_b32 s36, s33, 13")
    A("  s_add_u32 s36, s36, %d" % MB1)
    A("  v_add_u32 v10, s36, v10")
    A("  s_lshl_b32 s36, s33, 8")
    A("  s_add_u32 s36, s36, %d" % MBH)
    A("  v_and_b32 v5, 31, v0")
    A("  v_lshrrev_b32 v5, 1, v5")
    A("  v_lshl_add_u32 v5, v5, 4, s36")
    A("  s_movk_i32 s64, %d" % MBF)
    if warm:
        A("  s_mov_b64 exec, 0")
        A("  s_branch L_got1")
        A("L_hhwarm:")
        A("  s_mov_b64 exec, -1")
    A("  s_waitcnt lgkmcnt(0)")
    for k in range(4):
        A("  v_mov_b32 v%d, 0" % (12 + k))
    A("  buffer_store_dwordx4 v[12:15], v5, s[28:31], 0 offen")
    def TAGWAIT(lbl):
        A("%s:" % lbl)
        A("  s_sleep %d" % hns)
        A("  buffer_load_dwordx2 v[14:15], v11, s[24:27], s65 offen sc1")
        A("  s_sub_u32 s35, s35, 1")
        A("  s_cmp_eq_u32 s35, 0")
        A("  s_cbranch_scc1 L_end")
        A("  s_waitcnt vmcnt(0)")
        A("  v_min_u32 v6, v14, v15")
        A("  v_cmp_eq_u32 vcc, 0, v6")
        A("  s_cbranch_vccnz %s" % lbl)
    TAGWAIT("L_hhn")
    def ld(s):
        A("  buffer_load_dwordx4 v[%d:%d], v10, s[28:31], %s offen offset:%d sc1" % (32 + 4 * s, 35 + 4 * s, "0" if s < 4 else "s41", (s % 4) * 1024))
    for s in range(8):
        ld(s)
    A("L_poll1chk:")
    A("  s_waitcnt vmcnt(0)")
    for s in range(8):
        A("  v_cmp_ne_u64 s[%d:%d], v[%d:%d], v[14:15]" % (48 + 2 * s, 49 + 2 * s, 34 + 4 * s, 35 + 4 * s))
    for s in range(0, 8, 2):
        A("  v_add_f32 v%d, v%d, v%d" % (16 + s, 32 + 4 * s, 36 + 4 * s))
        A("  v_add_f32 v%d, v%d, v%d" % (17 + s, 33 + 4 * s, 37 + 4 * s))
    A("  s_or_b64 s[42:43], s[48:49], s[50:51]")
    A("  v_add_f32 v16, v16, v18")
    A("  s_or_b64 s[44:45], s[52:53], s[54:55]")
    A("  v_add_f32 v17, v17, v19")
    A("  s_or_b64 s[66:67], s[56:57], s[58:59]")
    A("  v_add_f32 v20, v20, v22")
    A("  s_or_b64 s[68:69], s[60:61], s[62:63]")
    A("  v_add_f32 v21, v21, v23")
    A("  s_or_b64 s[42:43], s[42:43], s[44:45]")
    A("  v_add_f32 v16, v16, v20")
    A("  s_or_b64 s[66:67], s[66:67], s[68:69]")
    A("  v_add_f32 v17, v17, v21")
    A("  v_cvt_pk_bf16_f32 v18, v16, v17")
    A("  v_mov_b32 v19, v18")
    A("  s_or_b64 s[42:43], s[42:43], s[66:67]")
    A("  s_cbranch_scc1 L_repoll")
    A("L_got1:")
    A("  v_permlane32_swap_b32 v18, v19")
    A("  s_nop 1")
    A("  v_lshlrev_b32 v16, 16, v18")
    A("  v_and_b32 v17, 0xffff0000, v18")
    A("  v_lshlrev_b32 v20, 16, v19")
    A("  v_and_b32 v21, 0xffff0000, v19")
    A("  v_mul_f32 v16, v16, v20")
    A("  v_mul_f32 v17, v17, v21")
    A("  v_cvt_pk_bf16_f32 v12, v16, v17")
    A("  s_nop 1")
    A("  v_mov_b32_dpp v13, v12 quad_perm:[1,0,3,2] row_mask:0xf bank_mask:0xf")
    if warm:
        A("  s_cbranch_execz L_hhwarm")
    A("  s_mov_b32 exec_lo, 0x55555555")
    A("  s_mov_b32 exec_hi, 0")
    A("  buffer_store_dwordx4 v[12:15], v5, s[28:31], 0 offen")
    A("  buffer_store_dwordx4 v[12:15], v5, s[28:31], s64 offen sc1")
    if stamps:
        ST(7)
        A("  s_cmp_lg_u32 s3, 3")
        A("  s_cbranch_scc1 L_end")
        STOUT([7])
    A("  s_endpgm")
    A("L_repoll:")
    A("  s_sub_u32 s35, s35, 1")
    A("  s_cmp_eq_u32 s35, 0")
    A("  s_cbranch_scc1 L_got1")
    for s in range(8):
        A("  s_mov_b64 exec, s[%d:%d]" % (48 + 2 * s, 49 + 2 * s))
        A("  s_cbranch_execz L_p1skip%d" % s)
        ld(s)
        A("L_p1skip%d:" % s)
    A("  s_mov_b64 exec, -1")
    A("  s_branch L_poll1chk")
    A("L_hred:")
    A("  s_lshl1_add_u32 s33, s2, s3")
    A("  s_mul_i32 s36, s33, 7168")
    A("  v_add_u32 v10, s36, v10")
    A("  v_and_b32 v3, 7, v0")
    A("  v_lshlrev_b32 v3, 2, v3")
    A("  v_lshrrev_b32 v4, 5, v0")
    A("  v_lshl_add_u32 v3, v4, 1, v3")
    A("  s_lshl_b32 s36, s33, 5")
    A("  v_add_u32 v3, s36, v3")
    A("  v_lshrrev_b32 v4, 3, v0")
    for i in range(7):
        A("  v_add_u32 v5, %d, v4" % (8 * i))
        A("  v_mul_u32_u24 v5, 37, v5")
        A("  v_lshrrev_b32 v5, 8, v5")
        A("  v_lshlrev_b32 v%d, 5, v5" % (80 + i))
    if wall:
        A("  s_mul_i32 s36, s33, 7168")
        A("  v_mul_u32_u24 v22, 896, v4")
        A("  v_add_u32 v22, s36, v22")
        A("  v_lshlrev_b32 v87, 5, v4")
    A("  s_mov_b32 s34, 0")
    if warm:
        for r in range(48, 62, 2):
            A("  s_mov_b64 s[%d:%d], 0" % (r, r + 1))
        A("  s_mov_b64 exec, 0")
        A("  s_branch L_hchk")
        A("L_hwarm:")
        A("  s_mov_b64 exec, -1")
        A("  s_mov_b32 s34, 1")
    A("  s_waitcnt lgkmcnt(0)")
    ST(1)
    A("L_hnonce:")
    A("  s_sleep %d" % hns)
    for i in range(8 if wall else 7):
        A("  buffer_load_dwordx2 v[%d:%d], v%d, s[24:27], 0 offen sc1" % (64 + 2 * i, 65 + 2 * i, 80 + i))
    A("  s_sub_u32 s35, s35, 1")
    A("  s_cmp_eq_u32 s35, 0")
    A("  s_cbranch_scc1 L_end")
    A("  s_waitcnt vmcnt(0)")
    A("  v_min3_u32 v6, v64, v65, v66")
    for r in range(67, 77, 2):
        A("  v_min3_u32 v6, v6, v%d, v%d" % (r, r + 1))
    if wall:
        A("  v_min3_u32 v6, v6, v78, v79")
    A("  v_min_u32 v6, v6, v77")
    A("  v_cmp_eq_u32 vcc, 0, v6")
    A("  s_cbranch_vccnz L_hnonce")
    ST(2)
    if trig:
        A("  s_mov_b32 exec_lo, 0x01010101")
        A("  s_mov_b32 exec_hi, 0x01010101")
        A("L_hwait:")
        A("  buffer_load_dwordx4 v[32:35], %s, s[28:31], 0 offen sc1" % ("v22" if wall else "v10"))
        A("  s_sub_u32 s35, s35, 1")
        A("  s_cmp_eq_u32 s35, 0")
        A("  s_cbranch_scc1 L_end")
        A("  s_waitcnt vmcnt(0)")
        A("  v_cmp_eq_u64 vcc, v[34:35], %s" % ("v[78:79]" if wall else "v[64:65]"))
        A("  s_cbranch_vccnz L_hgo")
        A("  s_sleep %d" % asleep)
        A("  s_branch L_hwait")
        A("L_hgo:")
        A("  s_mov_b64 exec, -1")
    for i in range(7):
        ld(i)
    A("L_hchk:")
    A("  s_waitcnt vmcnt(0)")
    for i in range(7):
        A("  v_cmp_ne_u64 s[%d:%d], v[%d:%d], v[%d:%d]" % (48 + 2 * i, 49 + 2 * i, 34 + 4 * i, 35 + 4 * i, 64 + 2 * i, 65 + 2 * i))
    A("  v_add_f32 v16, v32, v36")
    A("  v_add_f32 v17, v33, v37")
    A("  v_add_f32 v18, v40, v44")
    A("  v_add_f32 v19, v41, v45")
    A("  v_add_f32 v20, v48, v52")
    A("  v_add_f32 v21, v49, v53")
    A("  s_or_b64 s[42:43], s[48:49], s[50:51]")
    A("  v_add_f32 v16, v16, v56")
    A("  s_or_b64 s[44:45], s[52:53], s[54:55]")
    A("  v_add_f32 v17, v17, v57")
    A("  s_or_b64 s[46:47], s[56:57], s[58:59]")
    A("  v_add_f32 v18, v18, v20")
    A("  s_or_b64 s[42:43], s[42:43], s[60:61]")
    A("  v_add_f32 v19, v19, v21")
    A("  s_or_b64 s[44:45], s[44:45], s[46:47]")
    A("  v_add_f32 v16, v16, v18")
    A("  v_add_f32 v17, v17, v19")
    A("  s_or_b64 s[42:43], s[42:43], s[44:45]")
    A("  s_cbranch_scc1 L_hrepoll")
    A("L_hgot:")
    ST(3)
    A("  v_permlane32_swap_b32 v16, v17")
    A("  s_nop 1")
    A("  v_add_f32 v16, v16, v17")
    A("  s_nop 1")
    A("  v_add_f32_dpp v16, v16, v16 row_ror:8 row_mask:0xf bank_mask:0xf")
    A("  s_nop 1")
    A("  v_mov_b32 v17, v16")
    A("  s_nop 1")
    A("  v_permlane16_swap_b32 v16, v17")
    A("  s_nop 1")
    A("  v_add_f32 v16, v16, v17")
    A("  v_cvt_pk_bf16_f32 v16, v16, v16")
    if warm:
        A("  s_cbranch_execz L_hre2")
    A("  s_mov_b32 exec_lo, 0xff")
    A("  s_mov_b32 exec_hi, 0xff")
    A("  buffer_store_short v16, v3, s[20:23], 0 offen")
    if delay:
        A("  s_memrealtime s[44:45]")
        A("  s_waitcnt lgkmcnt(0)")
        A("L_delay:")
        A("  s_memrealtime s[42:43]")
        A("  s_waitcnt lgkmcnt(0)")
        A("  s_sub_u32 s42, s42, s44")
        A("  s_cmp_lt_u32 s42, %d" % delay)
        A("  s_cbranch_scc1 L_delay")
    if probe:
        A("  s_mov_b64 exec, -1")
        A("  buffer_load_dword v50, v11, s[24:27], 0 offen sc1")
        A("  s_memrealtime s[44:45]")
        A("  s_waitcnt lgkmcnt(0) vmcnt(0)")
        A("  v_readfirstlane_b32 s46, v50")
        A("  s_nop 3")
        A("  s_sub_u32 s47, s44, s46")
        A("  s_mul_i32 s47, s47, %d" % probe)
        A("  s_min_u32 s47, s47, 20000")
        A("L_probe:")
        A("  s_memrealtime s[42:43]")
        A("  s_waitcnt lgkmcnt(0)")
        A("  s_sub_u32 s42, s42, s44")
        A("  s_cmp_lt_u32 s42, s47")
        A("  s_cbranch_scc1 L_probe")
    if stamps:
        ST(4)
        A("  s_waitcnt vmcnt(0)")
        ST(5)
        A("  s_cmp_lg_u32 s3, 0")
        A("  s_cbranch_scc1 L_end")
        STOUT(range(0, 6))
    A("L_end:")
    A("  s_endpgm")
    A("L_hrepoll:")
    if not trig:
        A("  s_sleep %d" % asleep)
    A("  s_sub_u32 s35, s35, 1")
    A("  s_cmp_eq_u32 s35, 0")
    A("  s_cbranch_scc1 L_hgot")
    A("L_hre2:")
    for i in range(7):
        A("  s_mov_b64 exec, s[%d:%d]" % (48 + 2 * i, 49 + 2 * i))
        A("  s_cbranch_execz L_hskip%d" % i)
        ld(i)
        A("L_hskip%d:" % i)
    if warm:
        A("  s_cmp_eq_u32 s34, 0")
        A("  s_cbranch_scc1 L_hwarm")
    A("  s_mov_b64 exec, -1")
    A("  s_branch L_hchk")
    PUBLISH_FAR("v5", "a")
    SLOT_SLOW("a")
    SLOT_SLOW("b")
    A('.section .rodata,"a"')
    A(".p2align 6")
    A(".amdhsa_kernel %s_kernel" % NAME)
    A("  .amdhsa_next_free_vgpr 96")
    A("  .amdhsa_next_free_sgpr %d" % (102 if stamps else 80))
    A("  .amdhsa_accum_offset 96")
    A("  .amdhsa_group_segment_fixed_size 0")
    A("  .amdhsa_kernarg_size 56")
    A("  .amdhsa_user_sgpr_count 2")
    A("  .amdhsa_user_sgpr_kernarg_segment_ptr 1")
    A("  .amdhsa_system_sgpr_workgroup_id_x 1")
    A("  .amdhsa_float_denorm_mode_32 3")
    A(".end_amdhsa_kernel")
    return "\n".join(o) + "\n"

if __name__ == "__main__":
    out = sys.argv[1]
    kw = {}
    for a in sys.argv[2:]:
        k, v = a.split("=")
        kw[k] = int(v) if v.isdigit() else (int(v, 16) if v.startswith('0x') else v)
    open(out, "w").write(gen(**kw))
```
